```python
import torch

def _softmax(x, axis=-1):
    return torch.softmax(x, dim=axis)

def _gelu(x):
    return torch.nn.functional.gelu(x, approximate='tanh')

def _silu(x):
    return torch.nn.functional.silu(x)

def _sigmoid(x):
    return torch.sigmoid(x)

def _layernorm(x, axis=-1, eps=1e-05):
    m = x.mean(dim=axis, keepdim=True)
    v = x.var(dim=axis, keepdim=True, unbiased=False)
    return (x - m) / torch.sqrt(v + eps)

def _scatter_add(tgt, idx, src, axis=0):
    return tgt.clone().index_add_(axis, idx, src)

def _segment_sum(src, seg, n):
    out = torch.zeros((n,) + src.shape[1:], dtype=src.dtype)
    return out.index_add_(0, seg, src)

def _pad(x, pw):
    flat = tuple((v for pair in reversed(pw) for v in pair))
    return torch.nn.functional.pad(x, flat)
kernel_name = 'standalone__conformer_conv_module__speech'

def setup_inputs():

    _w = lambda a: (lambda t: t.to(torch.bfloat16) if t.is_floating_point() else t)(torch.as_tensor(a))
    B, T, D, K = (2, 4000, 512, 15)
    return {'x': _w((lambda *s: torch.randn(*s, dtype=torch.bfloat16) * 0.2)(B, T, D)), 'w_pw1': _w((lambda *s: torch.randn(*s, dtype=torch.bfloat16) * 0.2)(D, 2 * D)), 'dw': _w((lambda *s: torch.randn(*s, dtype=torch.bfloat16) * 0.2)(K, D)), 'w_pw2': _w((lambda *s: torch.randn(*s, dtype=torch.bfloat16) * 0.05)(D, D))}

def reference(x, w_pw1, dw, w_pw2):
    B, T, D = x.shape
    K = dw.shape[0]
    h = x @ w_pw1
    a, b = (h[..., :D].clone(), h[..., D:].clone())
    h = a * _sigmoid(b)
    pad = K // 2
    hp = _pad(h, ((0, 0), (pad, pad), (0, 0)))
    out = torch.zeros_like(h)
    for i in range(K):
        out = out + hp[:, i:i + T, :] * dw[i][None, None, :]
    return _silu(out) @ w_pw2
```

```python
import re

def regs(spec):
    if spec is None:
        return []
    if isinstance(spec, (list, tuple)):
        out = []
        for s in spec:
            out += regs(s)
        return out
    m = re.fullmatch(r"([vas])\[(\d+):(\d+)\]", spec)
    if m:
        return [f"{m.group(1)}{i}" for i in range(int(m.group(2)), int(m.group(3)) + 1)]
    if re.fullmatch(r"[vas]\d+", spec) or spec in ("vcc", "m0", "exec", "scc"):
        return [spec]
    return []

def R(kind, lo, n=1):
    return f"{kind}{lo}" if n == 1 else f"{kind}[{lo}:{lo+n-1}]"

class Em:
    def __init__(self):
        self.lines = []
        self.hist = []
        self.ds_issued = 0
        self.ds_done = 0
        self.vm_issued = 0
        self.vm_done = 0
        self.pend_ds = {}
        self.pend_vm = {}
        self.nlabel = 0
        self.count = {}

    def raw(self, text, states=1, kind="other", w=(), r=(), passes=0, srcc=()):
        self.lines.append("    " + text)
        self.hist.append(dict(kind=kind, w=set(w), r=set(r), passes=passes, states=states, srcc=set(srcc)))
        if len(self.hist) > 40:
            self.hist.pop(0)
        self.count[kind] = self.count.get(kind, 0) + 1

    def comment(self, text):
        self.lines.append("    ; " + text)

    def label(self, name):
        self.lines.append(name + ":")

    def newlabel(self, base="L"):
        self.nlabel += 1
        return f"{base}_{self.nlabel}"

    def nop(self, n):
        while n > 0:
            k = min(n, 16)
            self.raw(f"s_nop {k-1}", states=k, kind="nop")
            n -= k

    def wait_ds(self, idx):
        if idx < self.ds_done:
            return
        n = self.ds_issued - idx - 1
        n = min(n, 15)
        self.raw(f"s_waitcnt lgkmcnt({n})", kind="wait")
        self.ds_done = max(self.ds_done, self.ds_issued - n)

    def wait_vm(self, idx):
        if idx < self.vm_done:
            return
        n = self.vm_issued - idx - 1
        n = min(n, 63)
        self.raw(f"s_waitcnt vmcnt({n})", kind="wait")
        self.vm_done = max(self.vm_done, self.vm_issued - n)

    def wait_all(self, vm=True, ds=True):
        parts = []
        if vm:
            parts.append("vmcnt(0)"); self.vm_done = self.vm_issued
        if ds:
            parts.append("lgkmcnt(0)"); self.ds_done = self.ds_issued
        self.raw("s_waitcnt " + " ".join(parts), kind="wait")

    def _async(self, w, r):
        need_ds = -1; need_vm = -1
        for x in list(w) + list(r):
            if x in self.pend_ds:
                need_ds = max(need_ds, self.pend_ds[x])
            if x in self.pend_vm:
                need_vm = max(need_vm, self.pend_vm[x])
        if need_ds >= 0:
            self.wait_ds(need_ds)
        if need_vm >= 0:
            self.wait_vm(need_vm)
        for x in list(w) + list(r):
            self.pend_ds.pop(x, None); self.pend_vm.pop(x, None)

    def _hazard(self, kind, w, r, passes=0, srcc=(), ab=()):
        w = set(w); r = set(r); srcc = set(srcc); ab = set(ab)
        need = 0
        dist = 0
        for h in reversed(self.hist):
            req = 0
            hk = h["kind"]
            if hk in ("valu", "trans", "perm"):
                vw = {x for x in h["w"] if x[0] in "va" and x != "vcc"}
                sw = {x for x in h["w"] if x[0] == "s" or x == "vcc"}
                if kind == "mfma" and vw & r:
                    req = max(req, 2)
                if hk == "trans" and kind in ("valu", "perm") and vw & r:
                    req = max(req, 1)
                if hk == "trans" and kind in ("mfma", "ds", "vmem") and vw & r:
                    req = max(req, 2)
                if kind == "perm" and vw & (r | w):
                    req = max(req, 2)
                if kind == "rfl" and vw & r:
                    req = max(req, 1)
                if kind in ("valu", "trans", "perm") and sw & r:
                    req = max(req, 2)
                if kind == "vmem" and sw & r:
                    req = max(req, 5)
                if kind == "salu" and sw & r:
                    req = max(req, 1)
            if hk == "rfl":
                sw = h["w"]
                if kind in ("valu", "trans", "perm") and sw & r:
                    req = max(req, 2)
                if kind == "vmem" and sw & r:
                    req = max(req, 5)
                if kind == "salu" and sw & r:
                    req = max(req, 1)
            if hk == "mfma":
                p = h["passes"]
                full = {2: 5, 4: 8, 8: 12, 16: 20}[p]
                ovl = {2: 4, 4: 6, 8: 10, 16: 18}[p]
                same = {2: 2, 4: 0, 8: 0, 16: 0}[p]
                war = {2: 1, 4: 3, 8: 7, 16: 15}[p]
                if kind == "mfma":
                    if h["w"] & ab:
                        req = max(req, full)
                    if h["w"] & srcc:
                        if h["w"] == srcc and p == passes:
                            req = max(req, same)
                        else:
                            req = max(req, ovl)
                    if h["w"] & w and not (h["w"] == srcc and h["w"] == w):
                        if not (h["w"] == w and p == passes):
                            req = max(req, ovl)
                elif kind in ("valu", "trans", "perm", "ds", "vmem", "rfl"):
                    if h["w"] & (r | w):
                        req = max(req, full)
                    if kind in ("valu", "trans", "perm") and h["srcc"] & w:
                        req = max(req, war)
            if hk == "vmem" and h.get("wide_store"):
                if h["wide_store"] & w:
                    req = max(req, 2)
            if hk == "salu" and "m0" in h["w"] and kind == "vmem" and "m0" in r:
                req = max(req, 1)
            if req > dist:
                need = max(need, req - dist)
            dist += h["states"]
            if dist > 24:
                break
        if need:
            self.nop(need)

    def valu(self, text, w, r, kind="valu"):
        w = regs(w); r = regs(r)
        self._async(w, r)
        self._hazard(kind, w, r)
        self.raw(text, kind=kind, w=w, r=r)

    def trans(self, text, w, r):
        self.valu(text, w, r, kind="trans")

    def perm(self, a, b):
        self.valu(f"v_permlane16_swap_b32 {a}, {b}", [a, b], [a, b], kind="perm")

    def rfl(self, s, v):
        w = regs(s); r = regs(v)
        self._async(w, r)
        self._hazard("rfl", w, r)
        self.raw(f"v_readfirstlane_b32 {s}, {v}", kind="rfl", w=w, r=r)

    def salu(self, text, w=(), r=()):
        w = regs(w); r = regs(r)
        self._hazard("salu", w, r)
        self.raw(text, kind="salu", w=w, r=r)

    def mfma(self, op, d, a, b, c, passes):
        w = regs(d); ab = regs(a) + regs(b); cc = regs(c)
        self._async(w, ab + cc)
        self._hazard("mfma", w, ab + cc, passes=passes, srcc=cc, ab=ab)
        self.raw(f"{op} {d}, {a}, {b}, {c}", kind="mfma", w=w, r=ab + cc, passes=passes, srcc=cc)

    def m32(self, d, a, b, c):
        self.mfma("v_mfma_f32_32x32x16_bf16", d, a, b, c, 8)

    def m4(self, d, a, b, c):
        self.mfma("v_mfma_f32_4x4x4_16b_bf16", d, a, b, c, 2)

    def ds_read(self, op, d, addr, off):
        assert 0 <= off < 65536, off
        w = regs(d); r = regs(addr)
        self._async(w, r)
        self._hazard("ds", w, r)
        self.raw(f"{op} {d}, {addr} offset:{off}", kind="ds", w=w, r=r)
        for x in w:
            self.pend_ds[x] = self.ds_issued
        self.ds_issued += 1
        return self.ds_issued - 1

    def ds_write(self, op, addr, s, off):
        assert 0 <= off < 65536, off
        r = regs(addr) + regs(s)
        self._async([], r)
        self._hazard("ds", [], r)
        self.raw(f"{op} {addr}, {s} offset:{off}", kind="ds", r=r)
        self.ds_issued += 1
        return self.ds_issued - 1

    def vload(self, op, d, voff, srd, soff, off=0, flags="", keep=False):
        w = regs(d); r = regs(voff) + regs(srd) + regs(soff)
        if keep:
            self._async([], r)
        else:
            self._async(w, r)
        self._hazard("vmem", w, r)
        o = f" offset:{off}" if off else ""
        self.raw(f"{op} {d}, {voff}, {srd}, {soff} offen{o}{flags}", kind="vmem", w=w, r=r)
        for x in w:
            self.pend_vm[x] = self.vm_issued
        self.vm_issued += 1
        return self.vm_issued - 1

    def vstore(self, op, s, voff, srd, soff, off=0, flags=""):
        r = regs(s) + regs(voff) + regs(srd) + regs(soff)
        self._async([], r)
        self._hazard("vmem", [], r)
        o = f" offset:{off}" if off else ""
        self.raw(f"{op} {s}, {voff}, {srd}, {soff} offen{o}{flags}", kind="vmem", r=r)
        if "x4" in op or "x3" in op:
            self.hist[-1]["wide_store"] = set(regs(s))
        self.vm_issued += 1
        return self.vm_issued - 1

    def dma(self, voff, srd, soff, off=0, flags=""):
        r = regs(voff) + regs(srd) + regs(soff) + ["m0"]
        self._async([], r)
        self._hazard("vmem", [], r)
        o = f" offset:{off}" if off else ""
        self.raw(f"buffer_load_dwordx4 {voff}, {srd}, {soff} offen{o}{flags} lds", kind="vmem", r=r)
        self.vm_issued += 1
        return self.vm_issued - 1

    def barrier(self):
        self.raw("s_barrier", kind="barrier")

    def text(self):
        return "\n".join(self.lines) + "\n"
```

```python
import sys, os
sys.path.insert(0, os.path.dirname(__file__))
from em import Em, R

NAME = "standalone__conformer_conv_module__speech"
DIAG = "--diag" in sys.argv
OUTP = [a for a in sys.argv[1:] if not a.startswith("--")]

PAGE = 8192
HBASE = 17 * PAGE
HS = 160
HW = 16 * HS
DUMMY = HBASE + 8 * HW
LDS_BYTES = 163840
ST0 = [(4, 6), (8, 7), (10, 12), (14, 13), (0, 2), (16, 3), (18, 6), (4, 7)]
WS_S = 0
WS_HALO = 8 << 20
WS_SFLAG = 9 << 20
WS_HFLAG = 10 << 20
WS_DIAG = 11 << 20
WS_BYTES = 16 << 20
OOB = 0x80000000
SPIN_LIMIT = 1 << 18

sX, sW1, sW2, sWS, sOUT, sDW, sDBG = "s[20:23]", "s[24:27]", "s[28:31]", "s[32:35]", "s[36:39]", "s[40:43]", "s[44:47]"
sW, sCG, sP, sM, sG, sMM, sB, sC0 = "s48", "s49", "s50", "s51", "s52", "s53", "s54", "s55"
sKC = [f"s{56+j}" for j in range(8)]
sW1024, sW2048, sT0, sT1, sT2, sT3 = "s64", "s65", "s66", "s67", "s68", "s69"
sRT = "s[70:71]"
sSB = "s72"
sFB = "s73"
sHD = "s74"
sHF = "s75"
sND = "s76"
sNF = "s77"
sLB = "s78"
sPB = "s79"
sNEEDH = "s80"
sCNT = "s81"
sW4096 = "s82"
sCMP = "s[84:85]"
sDG = "s86"
sST = [f"s[{88+2*i}:{89+2*i}]" for i in range(6)]
vL = "v1"
vXA = [f"v{2+i}" for i in range(4)]
vXB = [f"v{6+i}" for i in range(4)]
vDX, vDX0, vDW1, vDW2 = "v10", "v11", "v12", "v13"
vHW, vHP1, vHP2 = "v14", "v15", "v120"
ACC, E = 16, 32
AF = [48 + 4 * i for i in range(6)]
CW = 72
vFL, vPF = "v82", "v83"
CI = 84
CO = 96
TT = 104
UU = 112
SF = 116
vHR, vHR1, vHR2, vSR, vSO, vSA, vOUT = "v121", "v122", "v123", "v124", "v125", "v126", "v127"
vWT = ["v84", "v85", "v86"]
vWU = ["v10", "v11"]
vEP = "v[12:13]"
EPR = 0
LOG2E_NEG = "s83"
vDD, vDR = "v116", "v117"

e = Em()

def V(i, n=1): return R("v", i, n)
def A(i, n=1): return R("a", i, n)

EP0, EP1 = "v68", "v69"
POL0, POL1 = "v70", "v71"
AF = AF[:5]

STAMPS = []
def stamp(name):
    if not DIAG:
        return
    STAMPS.append(str(name)); i = 2 + len(STAMPS)
    e.wait_all(vm=False, ds=True)
    e.raw(f"s_memtime {sST[0]}", kind="smem")
    e.raw("s_waitcnt lgkmcnt(0)", kind="wait")
    e.valu(f"v_mov_b32 v110, {sST[0].replace('[88:89]','88')}", "v110", [])
    e.vstore("buffer_store_dword", "v110", vFL, sWS, sDG, off=4 * i)

e.salu("s_cmp_ge_u32 s2, 256")
e.raw("s_cbranch_scc1 L_end", kind="branch")
e.raw("s_load_dwordx8 s[4:11], s[0:1], 0", kind="smem")
e.raw("s_load_dwordx4 s[12:15], s[0:1], 32", kind="smem")
e.raw("s_load_dwordx2 s[16:17], s[0:1], 48", kind="smem")
e.raw(f"s_memrealtime {sRT}", kind="smem")
if DIAG:
    e.raw(f"s_memtime {sST[1]}", kind="smem")
e.valu("v_lshrrev_b32 v104, 6, v0", "v104", "v0")
e.valu(f"v_and_b32 {vL}, 63, v0", vL, "v0")
e.rfl(sW, "v104")
e.salu(f"s_and_b32 {sT0}, s2, 7", sT0)
e.salu(f"s_lshr_b32 {sT1}, s2, 3", sT1)
e.salu(f"s_and_b32 {sG}, {sT1}, 7", sG, sT1)
e.salu(f"s_lshr_b32 {sT1}, {sT1}, 3", sT1, sT1)
e.salu(f"s_lshl_b32 {sM}, {sT0}, 2", sM, sT0)
e.salu(f"s_add_u32 {sM}, {sM}, {sT1}", sM, [sM, sT1])
e.salu(f"s_and_b32 {sMM}, {sM}, 15", sMM, sM)
e.salu(f"s_lshr_b32 {sB}, {sM}, 4", sB, sM)
e.salu(f"s_lshl_b32 {sT1}, {sT1}, 1", sT1, sT1)
e.salu(f"s_add_u32 {sC0}, {sG}, {sT1}", sC0, [sG, sT1])
e.salu(f"s_and_b32 {sCG}, {sW}, 3", sCG, sW)
e.salu(f"s_lshr_b32 {sP}, {sW}, 2", sP, sW)
e.salu(f"s_lshl_b32 {sW1024}, {sW}, 10", sW1024, sW)
e.salu(f"s_lshl_b32 {sW2048}, {sW}, 11", sW2048, sW)
for j in range(8):
    e.salu(f"s_add_u32 {sKC[j]}, {sC0}, {j}", sKC[j], sC0)
    e.salu(f"s_and_b32 {sKC[j]}, {sKC[j]}, 7", sKC[j], sKC[j])
    e.salu(f"s_lshl_b32 {sKC[j]}, {sKC[j]}, 7", sKC[j], sKC[j])
e.valu(f"v_lshrrev_b32 v104, 4, {vL}", "v104", vL)
e.valu(f"v_and_b32 v105, 7, {vL}", "v105", vL)
e.valu("v_lshlrev_b32 v106, 1, v104", "v106", "v104")
e.valu("v_xor_b32 v106, v106, v105", "v106", ["v106", "v105"])
e.valu("v_lshlrev_b32 v106, 4, v106", "v106", "v106")
e.valu(f"v_bfe_u32 v107, {vL}, 3, 1", "v107", vL)
e.valu("v_lshl_add_u32 v106, v107, 10, v106", "v106", ["v107", "v106"])
e.valu("v_lshl_add_u32 v106, v104, 11, v106", "v106", ["v104", "v106"])
e.salu(f"s_lshl_b32 {sT0}, {sW}, 14", sT0, sW)
e.salu(f"s_lshl_b32 {sT1}, {sG}, 7", sT1, sG)
e.salu(f"s_add_u32 {sT0}, {sT0}, {sT1}", sT0, [sT0, sT1])
e.valu(f"v_add_u32 {vDW1}, {sT0}, v106", vDW1, [sT0, "v106"])
e.valu(f"v_lshrrev_b32 v104, 3, {vL}", "v104", vL)
e.salu(f"s_lshl_b32 {sT0}, {sCG}, 3", sT0, sCG)
e.valu(f"v_add_u32 v104, {sT0}, v104", "v104", [sT0, "v104"])
e.valu("v_bfe_u32 v106, v104, 1, 3", "v106", "v104")
e.valu("v_xor_b32 v106, v106, v105", "v106", ["v106", "v105"])
e.salu(f"s_lshl_b32 {sT0}, {sMM}, 8", sT0, sMM)
e.salu(f"s_lshl_b32 {sT1}, {sP}, 7", sT1, sP)
e.salu(f"s_add_u32 {sT0}, {sT0}, {sT1}", sT0, [sT0, sT1])
e.salu(f"s_sub_u32 {sT0}, {sT0}, 7", sT0, sT0)
e.valu(f"v_add_u32 v104, {sT0}, v104", "v104", [sT0, "v104"])
e.valu("v_lshlrev_b32 v107, 10, v104", "v107", "v104")
e.valu("v_lshl_add_u32 v107, v106, 4, v107", "v107", ["v106", "v107"])
e.valu("v_cmp_gt_i32 vcc, 0, v104", "vcc", "v104")
e.valu(f"v_mov_b32 v106, {hex(OOB)}", "v106", [])
e.valu(f"v_cndmask_b32 {vDX0}, v107, v106, vcc", vDX0, ["v107", "v106", "vcc"])
e.valu(f"v_add_u32 {vDX}, 0x8000, v107", vDX, "v107")
e.raw("s_waitcnt lgkmcnt(0)", kind="wait")
e.salu(f"s_mul_i32 {sT0}, {sB}, 4096000", sT0, sB)
e.salu("s_mov_b32 s24, s6", "s24"); e.salu("s_mov_b32 s25, s7", "s25")
e.salu("s_mov_b32 s26, 1048576", "s26"); e.salu("s_mov_b32 s27, 0x00020000", "s27")
e.salu(f"s_add_u32 s20, s4, {sT0}", "s20", sT0); e.salu("s_addc_u32 s21, s5, 0", "s21")
e.salu("s_mov_b32 s22, 4096000", "s22"); e.salu("s_mov_b32 s23, 0x00020000", "s23")

page_dma = {}

def dma_x(page, j, voff):
    e.salu(f"s_add_u32 m0, {sW1024}, {page*PAGE}", "m0", sW1024)
    page_dma[page] = e.dma(voff, sX, sKC[j])

def dma_w(page, j, which):
    sh, srd, voff, row4 = (10, sW1, vDW1, 8192) if which == 1 else (9, sW2, vDW2, 4096)
    e.salu(f"s_add_u32 m0, {sW2048}, {page*PAGE}", "m0", sW2048)
    e.salu(f"s_lshl_b32 {sT2}, {sKC[j]}, {sh}", sT2, sKC[j])
    e.dma(voff, srd, sT2)
    e.salu(f"s_add_u32 {sT3}, {sT2}, {row4-1024}", sT3, sT2)
    idx = e.dma(voff, srd, sT3, off=1024)
    page_dma[page] = idx; page_dma[page + 1] = idx

def dma_chunk(j):
    dma_w(ST0[j][0], j, 1)
    dma_x(ST0[j][1], j, vDX0)
for j in range(3):
    dma_chunk(j)

e.salu("s_mov_b32 s28, s10", "s28"); e.salu("s_mov_b32 s29, s11", "s29")
e.salu("s_mov_b32 s30, 524288", "s30"); e.salu("s_mov_b32 s31, 0x00020000", "s31")
e.salu("s_mov_b32 s32, s16", "s32"); e.salu("s_mov_b32 s33, s17", "s33")
e.salu(f"s_mov_b32 s34, {WS_BYTES}", "s34"); e.salu("s_mov_b32 s35, 0x00020000", "s35")
e.salu(f"s_add_u32 s36, s12, {sT0}", "s36", sT0); e.salu("s_addc_u32 s37, s13, 0", "s37")
e.salu("s_mov_b32 s38, 4096000", "s38"); e.salu("s_mov_b32 s39, 0x00020000", "s39")
e.salu("s_mov_b32 s40, s8", "s40"); e.salu("s_mov_b32 s41, s9", "s41")
e.salu("s_mov_b32 s42, 15360", "s42"); e.salu("s_mov_b32 s43, 0x00020000", "s43")
e.salu("s_mov_b32 s44, s14", "s44"); e.salu("s_mov_b32 s45, s15", "s45")
e.salu("s_mov_b32 s46, 256", "s46"); e.salu("s_mov_b32 s47, 0x00020000", "s47")
e.valu(f"v_mov_b32 v106, {hex(OOB)}", "v106", [])
e.valu(f"v_cmp_eq_u32 vcc, 0, {vL}", "vcc", vL)
e.valu(f"v_cndmask_b32 {vFL}, v106, {vL}, vcc", vFL, ["v106", vL, "vcc"])
e.salu("s_or_b32 s70, s70, 1", "s70", "s70")
e.salu("s_lshl_b32 s71, s2, 10", "s71")
e.valu("v_add_u32 v104, s71, v0", "v104", ["s71", "v0"])
e.valu("v_cmp_eq_u32 vcc, 0, v104", "vcc", "v104")
e.valu("v_cndmask_b32 v104, v106, v104, vcc", "v104", ["v106", "v104", "vcc"])
e.valu("v_mov_b32 v105, s70", "v105", "s70")
e.vstore("buffer_store_dword", "v105", "v104", sDBG, "0", flags=" sc1")
e.valu(f"v_lshrrev_b32 v104, 2, {vL}", "v104", vL)
e.valu(f"v_and_b32 v105, 3, {vL}", "v105", vL)
e.salu(f"s_lshl_b32 {sT0}, {sG}, 7", sT0, sG)
e.salu(f"s_lshl_b32 {sT1}, {sCG}, 5", sT1, sCG)
e.salu(f"s_add_u32 {sT0}, {sT0}, {sT1}", sT0, [sT0, sT1])
e.salu(f"s_sub_u32 {sT0}, {sT0}, 3072", sT0, sT0)
e.valu(f"v_lshrrev_b32 v106, 1, {vL}", "v106", vL)
e.valu(f"v_lshl_add_u32 v106, v106, 10, {sT0}", "v106", ["v106", sT0])
e.valu(f"v_and_b32 v107, 1, {vL}", "v107", vL)
e.valu(f"v_lshl_add_u32 {vDD}, v107, 4, v106", vDD, ["v107", "v106"])
e.salu(f"s_add_u32 {sT1}, {sW1024}, {16*PAGE + 96}", sT1, sW1024)
e.valu(f"v_lshl_add_u32 v106, v104, 1, {sT1}", "v106", ["v104", sT1])
e.valu("v_lshlrev_b32 v107, 5, v105", "v107", "v105")
e.valu(f"v_sub_u32 {vDR}, v106, v107", vDR, ["v106", "v107"])
e.salu(f"s_mov_b32 {LOG2E_NEG}, 0xbfb8aa3b", LOG2E_NEG)
dma_chunk(3)
e.salu(f"s_mul_i32 {sT0}, {sW}, {HW}", sT0, sW)
e.salu(f"s_add_u32 {sT0}, {sT0}, {HBASE}", sT0, sT0)
e.valu(f"v_mul_u32_u24 v106, {HS}, v104", "v106", "v104")
e.valu("v_lshl_add_u32 v106, v105, 4, v106", "v106", ["v105", "v106"])
e.valu(f"v_add_u32 {vHR}, {sT0}, v106", vHR, [sT0, "v106"])
e.valu(f"v_subrev_u32 v107, 128, {vHR}", "v107", vHR)
e.valu("v_cmp_eq_u32 vcc, 3, v105", "vcc", "v105")
e.valu(f"v_cndmask_b32 {vHR1}, {vHR}, v107, vcc", vHR1, [vHR, "v107", "vcc"])
e.valu("v_cmp_lt_u32 vcc, 1, v105", "vcc", "v105")
e.valu(f"v_cndmask_b32 {vHR2}, {vHR}, v107, vcc", vHR2, [vHR, "v107", "vcc"])
e.valu(f"v_and_b32 v106, 15, {vL}", "v106", vL)
e.valu(f"v_mul_u32_u24 v106, {HS}, v106", "v106", "v106")
e.valu(f"v_bfe_u32 v107, {vL}, 4, 1", "v107", vL)
e.valu("v_lshl_add_u32 v106, v107, 4, v106", "v106", ["v107", "v106"])
e.valu(f"v_lshrrev_b32 v108, 5, {vL}", "v108", vL)
e.valu("v_lshl_add_u32 v106, v108, 3, v106", "v106", ["v108", "v106"])
e.valu(f"v_add_u32 {vHW}, {sT0}, v106", vHW, [sT0, "v106"])
e.salu(f"s_cmp_eq_u32 {sP}, 0", "scc", sP)
e.salu(f"s_sub_u32 {sT1}, {sT0}, {4*HW - 128}", sT1, sT0)
e.salu(f"s_cmp_eq_u32 {sP}, 0", "scc", sP)
e.salu(f"s_cselect_b32 {sT1}, {DUMMY}, {sT1}", sT1, [sT1, "scc"])
e.valu(f"v_add_u32 {vHP1}, {sT1}, v106", vHP1, [sT1, "v106"])
e.salu(f"s_add_u32 {sT1}, {sT0}, 128", sT1, sT0)
e.salu(f"s_cmp_eq_u32 {sP}, 0", "scc", sP)
e.salu(f"s_cselect_b32 {sT1}, {DUMMY}, {sT1}", sT1, [sT1, "scc"])
e.valu(f"v_add_u32 {vHP2}, {sT1}, v106", vHP2, [sT1, "v106"])
e.valu(f"v_bfe_u32 v109, {vL}, 2, 2", "v109", vL)
e.valu("v_lshl_add_u32 v106, v108, 3, v109", "v106", ["v108", "v109"])
e.valu(f"v_mul_u32_u24 v106, {HS}, v106", "v106", "v106")
e.valu("v_lshl_add_u32 v106, v107, 5, v106", "v106", ["v107", "v106"])
e.valu("v_lshl_add_u32 v106, v105, 3, v106", "v106", ["v105", "v106"])
e.valu(f"v_add_u32 {vSR}, {sT0}, v106", vSR, [sT0, "v106"])
e.valu("v_lshl_add_u32 v106, v108, 3, v109", "v106", ["v108", "v109"])
e.valu("v_lshlrev_b32 v106, 8, v106", "v106", "v106")
e.valu("v_lshrrev_b32 v110, 1, v105", "v110", "v105")
e.salu(f"s_lshl_b32 {sT1}, {sCG}, 1", sT1, sCG)
e.valu(f"v_add_u32 v110, {sT1}, v110", "v110", [sT1, "v110"])
e.valu("v_lshlrev_b32 v111, 1, v109", "v111", "v109")
e.valu("v_xor_b32 v110, v110, v111", "v110", ["v110", "v111"])
e.valu("v_lshl_add_u32 v110, v110, 4, v106", "v110", ["v110", "v106"])
e.valu("v_lshl_add_u32 v110, v107, 7, v110", "v110", ["v107", "v110"])
e.valu("v_and_b32 v111, 1, v105", "v111", "v105")
e.valu(f"v_lshl_add_u32 {vWT[0]}, v111, 3, v110", vWT[0], ["v111", "v110"])
e.valu(f"v_add_u32 {vWT[1]}, 0x10000, {vWT[0]}", vWT[1], vWT[0])
e.valu(f"v_add_u32 {vWT[2]}, 0x20000, {vWT[0]}", vWT[2], vWT[0])
e.valu(f"v_xor_b32 v110, {sCG}, v109", "v110", [sCG, "v109"])
e.valu("v_lshl_add_u32 v110, v110, 6, v106", "v110", ["v110", "v106"])
e.valu("v_lshl_add_u32 v110, v111, 5, v110", "v110", ["v111", "v110"])
e.valu("v_lshl_add_u32 v110, v107, 4, v110", "v110", ["v107", "v110"])
e.valu("v_lshrrev_b32 v111, 1, v105", "v111", "v105")
e.valu("v_lshl_add_u32 v0, v111, 3, v110", "v0", ["v111", "v110"])
vWU = ["v0", "v11"]
e.valu(f"v_and_b32 v106, 31, {vL}", "v106", vL)
e.valu("v_bfe_u32 v110, v106, 1, 3", "v110", "v106")
e.valu("v_xor_b32 v110, v110, v108", "v110", ["v110", "v108"])
e.salu(f"s_lshl_b32 {sT1}, {sP}, 12", sT1, sP)
e.valu(f"v_lshl_add_u32 v106, v106, 7, {sT1}", "v106", ["v106", sT1])
for s_ in range(4):
    e.valu(f"v_xor_b32 v111, {2*s_}, v110", "v111", "v110")
    e.valu(f"v_lshl_add_u32 {vXA[s_]}, v111, 4, v106", vXA[s_], ["v111", "v106"])
    e.valu(f"v_add_u32 {vXB[s_]}, 0x10000, {vXA[s_]}", vXB[s_], vXA[s_])
e.valu(f"v_lshrrev_b32 v106, 4, {vL}", "v106", vL)
e.valu("v_xor_b32 v110, v109, v106", "v110", ["v109", "v106"])
e.valu("v_lshl_add_u32 v110, v110, 2, v105", "v110", ["v110", "v105"])
e.valu("v_lshlrev_b32 v110, 4, v110", "v110", "v110")
e.valu("v_lshl_add_u32 v110, v106, 10, v110", "v110", ["v106", "v110"])
e.salu(f"s_lshl_b32 {sT0}, {sW}, 13", sT0, sW)
e.salu(f"s_lshr_b32 {sT1}, {sG}, 1", sT1, sG)
e.salu(f"s_lshl_b32 {sT1}, {sT1}, 8", sT1, sT1)
e.salu(f"s_add_u32 {sT0}, {sT0}, {sT1}", sT0, [sT0, sT1])
e.valu(f"v_add_u32 {vDW2}, {sT0}, v110", vDW2, [sT0, "v110"])
e.salu(f"s_lshl_b32 {sT0}, {sCG}, 6", sT0, sCG)
e.salu(f"s_add_u32 {sT1}, {sT1}, {sT0}", sT1, [sT1, sT0])
e.salu(f"s_and_b32 {sT0}, {sG}, 1", sT0, sG)
e.salu(f"s_lshl_b32 {sT2}, {sT0}, 17", sT2, sT0)
e.salu(f"s_add_u32 {sT1}, {sT1}, {sT2}", sT1, [sT1, sT2])
e.salu(f"s_lshl_b32 {sT2}, {sMM}, 18", sT2, sMM)
e.salu(f"s_add_u32 {sT1}, {sT1}, {sT2}", sT1, [sT1, sT2])
e.salu(f"s_lshl_b32 {sT2}, {sP}, 15", sT2, sP)
e.salu(f"s_add_u32 {sT1}, {sT1}, {sT2}", sT1, [sT1, sT2])
e.valu(f"v_and_b32 v106, 31, {vL}", "v106", vL)
e.valu(f"v_lshl_add_u32 v106, v106, 10, {sT1}", "v106", ["v106", sT1])
e.valu(f"v_lshl_add_u32 {vOUT}, v108, 5, v106", vOUT, ["v108", "v106"])
e.valu(f"v_lshlrev_b32 {vSO}, 4, {vL}", vSO, vL)
e.salu(f"s_lshl_b32 {sT1}, {sP}, 15", sT1, sP)
e.valu(f"v_add_u32 {vSA}, {sT1}, {vSO}", vSA, [sT1, vSO])
e.valu(f"v_lshlrev_b32 v106, 3, v105", "v106", "v105")
e.valu(f"v_lshl_add_u32 v106, v104, 10, v106", "v106", ["v104", "v106"])
e.valu(f"v_mov_b32 v110, {hex(OOB)}", "v110", [])
e.valu(f"v_cmp_gt_u32 vcc, 8, {vL}", "vcc", vL)
e.valu(f"v_cndmask_b32 {vPF}, v110, v106, vcc", vPF, ["v110", "v106", "vcc"])
e.salu(f"s_lshl_b32 {sT1}, {sG}, 2", sT1, sG)
e.salu(f"s_add_u32 {sT1}, {sT1}, {sCG}", sT1, [sT1, sCG])
e.salu(f"s_lshl_b32 {sT2}, {sM}, 3", sT2, sM)
e.salu(f"s_lshl_b32 {sT3}, {sP}, 2", sT3, sP)
e.salu(f"s_add_u32 {sT3}, {sT3}, {sT2}", sT3, [sT3, sT2])
e.salu(f"s_lshl_b32 {sSB}, {sT3}, 5", sSB, sT3)
e.salu(f"s_add_u32 {sSB}, {sSB}, {sT1}", sSB, [sSB, sT1])
e.salu(f"s_lshl_b32 {sSB}, {sSB}, 10", sSB, sSB)
e.salu(f"s_lshl_b32 {sFB}, {sT3}, 3", sFB, sT3)
e.salu(f"s_add_u32 {sFB}, {sFB}, {sG}", sFB, [sFB, sG])
e.salu(f"s_lshl_b32 {sFB}, {sFB}, 7", sFB, sFB)
e.salu(f"s_lshl_b32 {sT3}, {sCG}, 3", sT3, sCG)
e.salu(f"s_add_u32 {sFB}, {sFB}, {sT3}", sFB, [sFB, sT3])
e.salu(f"s_add_u32 {sFB}, {sFB}, {WS_SFLAG}", sFB, sFB)
e.salu(f"s_lshl_b32 {sT3}, {sM}, 5", sT3, sM)
e.salu(f"s_add_u32 {sT3}, {sT3}, {sT1}", sT3, [sT3, sT1])
e.salu(f"s_lshl_b32 {sHD}, {sT3}, 9", sHD, sT3)
e.salu(f"s_add_u32 {sHD}, {sHD}, {WS_HALO}", sHD, sHD)
e.salu(f"s_add_u32 {sND}, {sHD}, {32*512}", sND, sHD)
e.salu(f"s_lshl_b32 {sHF}, {sT3}, 7", sHF, sT3)
e.salu(f"s_add_u32 {sHF}, {sHF}, {WS_HFLAG}", sHF, sHF)
e.salu(f"s_add_u32 {sNF}, {sHF}, {32*128}", sNF, sHF)
e.salu(f"s_cmp_eq_u32 {sP}, 0", "scc", sP)
e.salu(f"s_cselect_b32 {sHD}, {sHD}, {WS_BYTES}", sHD, [sHD, "scc"])
e.salu(f"s_cselect_b32 {sHF}, {sHF}, {WS_BYTES}", sHF, [sHF, "scc"])
e.salu(f"s_cmp_lg_u32 {sMM}, 15", "scc", sMM)
e.salu(f"s_cselect_b32 {sNEEDH}, {sP}, 0", sNEEDH, [sP, "scc"])
e.salu(f"s_add_u32 {sT1}, {sC0}, {sW}", sT1, [sC0, sW])
e.salu(f"s_and_b32 {sT1}, {sT1}, 7", sT1, sT1)
e.salu(f"s_lshl_b32 {sT3}, {sT0}, 2", sT3, sT0)
e.salu(f"s_add_u32 {sT3}, {sT3}, {sT2}", sT3, [sT3, sT2])
e.salu(f"s_lshl_b32 {sT3}, {sT3}, 3", sT3, sT3)
e.salu(f"s_add_u32 {sT3}, {sT3}, {sT1}", sT3, [sT3, sT1])
e.salu(f"s_lshl_b32 {sLB}, {sT3}, 12", sLB, sT3)
e.salu(f"s_lshl_b32 {sPB}, {sT3}, 7", sPB, sT3)
e.salu(f"s_add_u32 {sPB}, {sPB}, {WS_SFLAG}", sPB, sPB)
e.salu(f"s_lshl_b32 {sW4096}, {sW}, 12", sW4096, sW)
if DIAG:
    e.salu(f"s_lshl_b32 {sDG}, s2, 3", sDG)
    e.salu(f"s_add_u32 {sDG}, {sDG}, {sW}", sDG, [sDG, sW])
    e.salu(f"s_lshl_b32 {sDG}, {sDG}, 8", sDG, sDG)
    e.salu(f"s_add_u32 {sDG}, {sDG}, {WS_DIAG}", sDG, sDG)
    e.valu("v_mov_b32 v110, s90", "v110", [])
    e.vstore("buffer_store_dword", "v110", vFL, sWS, sDG, off=0)
    e.valu("v_mov_b32 v110, s70", "v110", [])
    e.vstore("buffer_store_dword", "v110", vFL, sWS, sDG, off=4)
stamp('pro')

def barrier_with(pages, name=None):
    idx = max([page_dma[p] for p in pages], default=-1)
    if name: stamp(name + ".pre")
    if idx >= 0:
        e.wait_vm(idx)
    if name: stamp(name + ".vm")
    e.barrier()
    if name: stamp(name)

def x_read(dst, page, s_):
    base = vXA if page < 8 else vXB
    e.ds_read("ds_read_b128", V(dst, 4), base[s_], (page % 8) * PAGE)

def w_tr(bases, f, page, s_):
    for ee in range(2):
        addr = page * PAGE + 4096 * s_ + 1024 * ee
        e.ds_read("ds_read_b64_tr_b16", A(4 * f + 2 * ee, 2), bases[addr >> 16], addr & 0xffff)

def poll_check(mask, load, maskreg=None):
    ok = e.newlabel("L_ok"); lp = e.newlabel("L_poll")
    def chk():
        e.valu(f"v_cmp_eq_u32 vcc, {EP0}, {POL0}", "vcc", [EP0, POL0])
        e.valu(f"v_cmp_eq_u32 {sCMP}, {EP1}, {POL1}", sCMP, [EP1, POL1])
        e.nop(2)
        e.salu("s_and_b32 s84, s84, vcc_lo", "s84", ["s84", "vcc"])
        mk = maskreg if maskreg else str(mask)
        e.salu(f"s_and_b32 s84, s84, {mk}", "s84", "s84")
        e.salu(f"s_cmp_eq_u32 s84, {mk}", "scc", "s84")
        e.raw(f"s_cbranch_scc1 {ok}", kind="branch")
    chk()
    e.salu(f"s_mov_b32 {sCNT}, 0", sCNT)
    e.label(lp)
    e.raw("s_sleep 1", kind="other")
    e.raw(load, kind="other")
    e.raw("s_waitcnt vmcnt(0)", kind="wait")
    chk()
    e.salu(f"s_add_u32 {sCNT}, {sCNT}, 1", sCNT, sCNT)
    e.salu(f"s_cmp_lt_u32 {sCNT}, {SPIN_LIMIT}", "scc", sCNT)
    e.raw(f"s_cbranch_scc1 {lp}", kind="branch")
    e.label(ok)
    e.nop(2)

def poll_issue(voff, soff):
    e.vload("buffer_load_dwordx2", f"v[{POL0[1:]}:{POL1[1:]}]", voff, sWS, soff, flags=" sc1")
    return f"buffer_load_dwordx2 v[{POL0[1:]}:{POL1[1:]}], {voff}, {sWS}, {soff} offen sc1"

def glu_fillers(r, first=False):
    F = []
    slot = r % 2
    for gp in (0, 2):
        a = [E + 4 * gp + j for j in range(4)]
        b = [E + 4 * (gp + 1) + j for j in range(4)]
        for j in range(4):
            F.append((9, lambda a=a[j], b=b[j]: e.perm(V(a), V(b))))
        for j in range(4):
            F.append((4, lambda b=b[j]: e.valu(f"v_mul_f32 {V(b)}, {LOG2E_NEG}, {V(b)}", V(b), V(b))))
        for j in range(4):
            F.append((9, lambda b=b[j]: e.trans(f"v_exp_f32 {V(b)}, {V(b)}", V(b), V(b))))
        for j in range(4):
            F.append((4, lambda b=b[j]: e.valu(f"v_add_f32 {V(b)}, 1.0, {V(b)}", V(b), V(b))))
        for j in range(4):
            F.append((9, lambda b=b[j]: e.trans(f"v_rcp_f32 {V(b)}, {V(b)}", V(b), V(b))))
        for j in range(4):
            F.append((4, lambda a=a[j], b=b[j]: e.valu(f"v_mul_f32 {V(a)}, {V(a)}, {V(b)}", V(a), [V(a), V(b)])))
        u = UU + gp
        F.append((4, lambda a=a, u=u: e.valu(f"v_cvt_pk_bf16_f32 {V(u)}, {V(a[0])}, {V(a[1])}", V(u), [V(a[0]), V(a[1])])))
        F.append((4, lambda a=a, u=u: e.valu(f"v_cvt_pk_bf16_f32 {V(u+1)}, {V(a[2])}, {V(a[3])}", V(u + 1), [V(a[2]), V(a[3])])))
        F.append((1, lambda u=u, gp=gp: e.ds_write("ds_write_b64", vHW, V(u, 2), slot * 64 + gp * 16)))
        if first and gp == 0:
            F.append((1, lambda u=u: e.ds_write("ds_write_b64", vHP1, V(u, 2), 0)))
            def halo_store(u=u):
                e.valu(f"v_lshlrev_b32 v{TT}, 3, {vL}", V(TT), vL)
                st["halo_store"] = e.vstore("buffer_store_dwordx2", V(u, 2), V(TT), sWS, sHD, flags=" sc1")
            F.append((9, halo_store))
    return F

st = {}
def out_fillers(r):
    F = []
    slot = r % 2
    for u in range(3):
        if r == 1:
            base = [vHR, vHR1, vHR2][u]
        else:
            base = vHR
        F.append((1, lambda u=u, base=base: e.ds_read("ds_read_b128", V(CI + 4 * u, 4), base, slot * 64 + 16 * u)))
    def conv():
        for q in range(5):
            for o in range(2):
                d = V(CO + 4 * o, 4)
                e.m4(d, V(CW + 2 * q, 2), V(CI + 2 * (o + q), 2), d if q else "0")
    F.append((90, conv))
    for j in range(8):
        F.append((4, lambda j=j: e.valu(f"v_mul_f32 {V(TT+j)}, {LOG2E_NEG}, {V(CO+j)}", V(TT + j), V(CO + j))))
    for j in range(8):
        F.append((9, lambda j=j: e.trans(f"v_exp_f32 {V(TT+j)}, {V(TT+j)}", V(TT + j), V(TT + j))))
    for j in range(8):
        F.append((4, lambda j=j: e.valu(f"v_add_f32 {V(TT+j)}, 1.0, {V(TT+j)}", V(TT + j), V(TT + j))))
    for j in range(8):
        F.append((9, lambda j=j: e.trans(f"v_rcp_f32 {V(TT+j)}, {V(TT+j)}", V(TT + j), V(TT + j))))
    for j in range(8):
        F.append((4, lambda j=j: e.valu(f"v_mul_f32 {V(TT+j)}, {V(CO+j)}, {V(TT+j)}", V(TT + j), [V(CO + j), V(TT + j)])))
    for j in range(4):
        F.append((4, lambda j=j: e.valu(f"v_cvt_pk_bf16_f32 {V(UU+j)}, {V(TT+2*j)}, {V(TT+2*j+1)}", V(UU + j), [V(TT + 2 * j), V(TT + 2 * j + 1)])))
    F.append((1, lambda: e.ds_write("ds_write_b128", vHR, V(UU, 4), slot * 64)))
    for ee in range(2):
        F.append((1, lambda ee=ee: e.ds_read("ds_read_b64_tr_b16", V(SF + 2 * ee, 2), vSR, ee * 4 * HS + slot * 64)))
    F.append((12, lambda: None))
    def store():
        e.salu(f"s_add_u32 {sT2}, {sSB}, {r*32768}", sT2, sSB)
        st[("S", r)] = e.vstore("buffer_store_dwordx4", V(SF, 4), vSO, sWS, sT2, flags=" sc1")
    F.append((9, store))
    return F

def flag_store(idx_key, soff_reg, add):
    e.wait_vm(st[idx_key])
    if add:
        e.salu(f"s_add_u32 {sT2}, {soff_reg}, {add}", sT2, soff_reg)
        soff_reg = sT2
    e.vstore("buffer_store_dwordx2", f"v[{EP0[1:]}:{EP1[1:]}]", vFL, sWS, soff_reg, flags=" sc1")

class Ring:
    def __init__(self):
        self.reads = []
        self.avail = 0
        self.issued = 0
        self.used = 0
    def fill(self):
        while self.issued < min(self.avail, self.used + len(AF)):
            self.reads[self.issued](AF[self.issued % len(AF)])
            self.issued += 1
    def take(self):
        assert self.used < self.issued, "fragment not issued"
        r = AF[self.used % len(AF)]
        self.used += 1
        return r

ring = Ring()

def run_segment(mf, F, lead=0):
    n = len(mf)
    tot = sum(c for c, _ in F)
    done = 0; fi = 0
    for i in range(n):
        ring.fill()
        fr = ring.take()
        mf[i](fr)
        ring.fill()
        target = tot * (i + 1 + lead) / n
        while fi < len(F) and done < target:
            F[fi][1](); done += F[fi][0]; fi += 1
    while fi < len(F):
        F[fi][1](); fi += 1

def run_fillers(F):
    for c, f in F:
        f()

def g1_mfma(f):
    def m(fr):
        d = V(E, 16) if f == 31 else V(ACC, 16)
        e.m32(d, V(fr, 4), A(4 * f, 4), V(ACC, 16) if f else "0")
    return m

def g2_mfma(f):
    def m(fr):
        d = V(E, 16) if f == 31 else V(ACC, 16)
        e.m32(d, A(4 * f, 4), V(fr, 4), V(ACC, 16) if f else "0")
    return m

XQ = {1: [8, 9, 10, 11, 12, 13, 14, 15], 2: [0, 1, 2, 3, 4, 5, 6, 7], 3: [8, 9, 10, 11, 12, 13, 14, 15]}
def dma_dw():
    e.salu(f"s_add_u32 m0, {sW1024}, {16*PAGE}", "m0", sW1024)
    st["dw"] = e.dma(vDD, sDW, "0")
after = {
    0: lambda: dma_chunk(4),
    1: lambda: dma_chunk(5),
    2: lambda: dma_chunk(6),
    3: lambda: dma_chunk(7),
    4: lambda: (dma_x(8, 0, vDX), dma_x(9, 1, vDX), dma_x(10, 2, vDX)),
    5: lambda: (dma_x(11, 3, vDX), dma_x(12, 4, vDX), dma_x(13, 5, vDX)),
    6: lambda: (dma_x(14, 6, vDX), dma_x(15, 7, vDX), dma_dw(),
                e.valu(f"v_add_u32 {vDX}, 0x8000, {vDX}", vDX, vDX)),
    7: lambda: (dma_x(0, 0, vDX), dma_x(1, 1, vDX), dma_x(2, 2, vDX), dma_x(3, 3, vDX),
                e.vload("buffer_load_dword", EP0, vFL, sDBG, "0", flags=" sc1")),
}
for j in range(8):
    wp, xp = ST0[j]
    barrier_with([wp, wp + 1, xp], f"c{j}" if j in (0, 4) else None)
    for s_ in range(4):
        ring.reads.append(lambda dst, xp=xp, s_=s_: x_read(dst, xp, s_))
    ring.avail = len(ring.reads)
    for s_ in range(4):
        w_tr(vWT, 4 * j + s_, wp, s_)
        ring.fill()
    run_segment([g1_mfma(4 * j + s_) for s_ in range(4)], [])
    after[j]()

base_idx = len(ring.reads)
for s in (1, 2, 3):
    for j in range(8):
        for s_ in range(4):
            ring.reads.append(lambda dst, p=XQ[s][j], s_=s_: x_read(dst, p, s_))

def dma_group(k):
    F = []
    if k == 0:
        for j in range(4, 8):
            F.append((9, lambda j=j: dma_x(j, j, vDX)))
        F.append((4, lambda: e.valu(f"v_add_u32 {vDX}, 0x8000, {vDX}", vDX, vDX)))
    elif k == 1:
        for j in range(4):
            F.append((9, lambda j=j: dma_x(8 + j, j, vDX)))
    elif k == 2:
        for j in range(4, 8):
            F.append((9, lambda j=j: dma_x(8 + j, j, vDX)))
    else:
        for j in (2 * (k - 3), 2 * (k - 3) + 1):
            F.append((18, lambda j=j: dma_w(2 * j, j, 2)))
    return F

def merge(F1, F2):
    if not F1: return F2
    out = []; n1 = len(F1); n2 = len(F2); k = 0
    for i, f in enumerate(F1):
        while k < n2 and k * n1 <= i * n2:
            out.append(F2[k]); k += 1
        out.append(f)
    return out + F2[k:]

for k in range(6):
    s = 1 + k // 2; half = k % 2
    pages_now = XQ[s][4 * half: 4 * half + 4]
    need = list(pages_now)
    nxt = None
    if k >= 1 and k < 5:
        s2_, h2 = 1 + (k + 1) // 2, (k + 1) % 2
        nxt = XQ[s2_][4 * h2: 4 * h2 + 4]
        need += nxt
    if k == 5:
        need += [0, 1, 2, 3]
    barrier_with(need, f"k{k}")
    ring.avail = base_idx + 16 * (k + 1) + (16 if nxt else 0)
    pre = []
    if k == 1:
        ok = e.newlabel("L_eok"); lp = e.newlabel("L_ep")
        e.valu(f"v_cmp_ne_u32 vcc, 0, {EP0}", "vcc", EP0)
        e.nop(2)
        e.salu("s_and_b32 s84, vcc_lo, 1", "s84", "vcc")
        e.raw(f"s_cbranch_scc1 {ok}", kind="branch")
        e.salu(f"s_mov_b32 {sCNT}, 0", sCNT)
        e.label(lp)
        e.raw("s_sleep 1")
        e.raw(f"buffer_load_dword {EP0}, {vFL}, {sDBG}, 0 offen sc1")
        e.raw("s_waitcnt vmcnt(0)", kind="wait")
        e.valu(f"v_cmp_ne_u32 vcc, 0, {EP0}", "vcc", EP0)
        e.nop(2)
        e.salu("s_and_b32 s84, vcc_lo, 1", "s84", "vcc")
        e.raw(f"s_cbranch_scc1 {ok}", kind="branch")
        e.salu(f"s_add_u32 {sCNT}, {sCNT}, 1", sCNT, sCNT)
        e.salu(f"s_cmp_lt_u32 {sCNT}, {SPIN_LIMIT}", "scc", sCNT)
        e.raw(f"s_cbranch_scc1 {lp}", kind="branch")
        e.label(ok)
        e.nop(2)
        e.rfl("s70", EP0)
        e.valu(f"v_mov_b32 {EP0}, s70", EP0, "s70")
        e.valu(f"v_not_b32 {EP1}, s70", EP1, "s70")
    F = []
    if half == 0:
        F = glu_fillers(s - 1, first=(s == 1))
    elif s >= 2:
        F = out_fillers(s - 2)
    extra = dma_group(k)
    if k == 1:
        F = [(1, lambda: e.wait_vm(st["dw"]))]
        for n in range(20):
            F.append((1, lambda n=n: e.ds_read("ds_read_u16", V(CI + n), vDR, n * 32)))
        F.append((30, lambda: None))
        for n in range(10):
            F.append((4, lambda n=n: e.valu(f"v_lshl_or_b32 {V(CW+n)}, {V(CI+2*n+1)}, 16, {V(CI+2*n)}", V(CW + n), [V(CI + 2 * n + 1), V(CI + 2 * n)])))
    if k == 2:
        extra = [(9, lambda: flag_store("halo_store", sHF, 0))] + extra
    if k == 3:
        extra = [(9, lambda: st.__setitem__("hp", poll_issue(vFL, sNF)))] + extra
    if k == 4:
        def halo_get():
            poll_check(1, st["hp"], maskreg=sNEEDH)
            e.valu(f"v_lshlrev_b32 v{TT}, 3, {vL}", V(TT), vL)
            e.vload("buffer_load_dwordx2", V(SF, 2), V(TT), sWS, sND, flags=" sc1")
        extra = [(20, halo_get)] + extra
    if k == 5:
        extra = [(5, lambda: e.ds_write("ds_write_b64", vHP2, V(SF, 2), 0)),
                 (9, lambda: flag_store(("S", 0), sFB, 0)),
                 (4, lambda: e.valu(f"v_add_u32 {vWU[1]}, 0x10000, {vWU[0]}", vWU[1], vWU[0]))] + extra
        wl = [(1, lambda f=f: w_tr(vWU, f, 2 * (f // 4), f % 4)) for f in range(8)]
        extra = extra + wl + [(9, lambda: st.__setitem__("tp", poll_issue(vPF, sPB)))]
    F = merge(F, extra)
    run_segment([g1_mfma(16 * half + i) for i in range(16)], F)

def dma_T(i):
    for q in range(4):
        e.salu(f"s_add_u32 m0, {sW4096}, {i*4*PAGE + q*1024}", "m0", sW4096)
        e.salu(f"s_add_u32 {sT2}, {sLB}, {i*32768 + q*1024}", sT2, sLB)
        idx = e.dma(vSO, sWS, sT2, flags=" sc1")
    for p in range(4 * i, 4 * i + 4):
        page_dma[p] = idx

e.wait_all(vm=False, ds=True)
barrier_with([4, 5, 6, 7], "B0")
dma_w(12, 6, 2); dma_w(14, 7, 2)
G = glu_fillers(3)
run_fillers(G[:12])
stamp("t0a")
poll_check(0xF, st["tp"])
stamp("t0b")
dma_T(0)
wl = [(1, lambda f=f: w_tr(vWU, f, 2 * (f // 4), f % 4)) for f in range(8, 16)]
run_fillers(merge(G[12:], wl))
flag_store(("S", 1), sFB, 1024)
run_fillers(out_fillers(2))
e.wait_all(vm=False, ds=True)
barrier_with([8, 9, 10, 11], "B1")
wl = [(1, lambda f=f: w_tr(vWU, f, 2 * (f // 4), f % 4)) for f in range(16, 24)]
O3 = out_fillers(3)
run_fillers(merge(O3, wl))
stamp("o3")
flag_store(("S", 2), sFB, 2048)
tp = poll_issue(vPF, sPB)
flag_store(("S", 3), sFB, 3072)
stamp("f3")
poll_check(0xF0, tp)
stamp("t1")
dma_T(1)
e.wait_all(vm=False, ds=True)
barrier_with(list(range(16)), "B2")
t0 = len(ring.reads)
for f in range(32):
    ring.reads.append(lambda dst, f=f: e.ds_read("ds_read_b128", V(dst, 4), vSA, f * 1024))
ring.avail = len(ring.reads)
wl = [(1, lambda f=f: w_tr(vWU, f, 2 * (f // 4), f % 4)) for f in range(24, 32)]
run_segment([g2_mfma(f) for f in range(12)], wl, lead=4)
e.wait_ds(max(e.pend_ds.get(f"a{i}", -1) for i in range(96, 128)))
e.barrier()
e.salu(f"s_add_u32 {sPB}, {sPB}, 2048", sPB, sPB)
tp = poll_issue(vPF, sPB)
run_segment([g2_mfma(f) for f in range(12, 20)], [])
stamp('p23a')
poll_check(0xFF, tp)
stamp('p23b')
dma_T(2); dma_T(3)
run_segment([g2_mfma(f) for f in range(20, 32)], [])

def out_epilogue(second):
    for j in range(8):
        e.valu(f"v_cvt_pk_bf16_f32 {V(TT+j)}, {V(E+2*j)}, {V(E+2*j+1)}", V(TT + j), [V(E + 2 * j), V(E + 2 * j + 1)])
    e.vstore("buffer_store_dwordx4", V(TT, 4), vOUT, sOUT, "0")
    e.vstore("buffer_store_dwordx4", V(TT + 4, 4), vOUT, sOUT, "0", off=16)

e.valu(f"v_add_u32 {vSA}, 0x10000, {vSA}", vSA, vSA)
out_epilogue(False)
e.valu(f"v_add_u32 {vOUT}, 0x10000, {vOUT}", vOUT, vOUT)
barrier_with(list(range(8, 16)), "B4")
for f in range(32):
    ring.reads.append(lambda dst, f=f: e.ds_read("ds_read_b128", V(dst, 4), vSA, f * 1024))
ring.avail = len(ring.reads)
run_segment([g2_mfma(f) for f in range(32)], [])
stamp('g2end')
out_epilogue(True)
if DIAG:
    e.wait_all()
    stamp('end')
    e.raw(f"s_memrealtime {sST[0]}", kind="smem")
    e.raw("s_waitcnt lgkmcnt(0)", kind="wait")
    e.valu("v_mov_b32 v110, s88", "v110", [])
    e.vstore("buffer_store_dword", "v110", vFL, sWS, sDG, off=8)
e.label("L_end")

header = open(os.path.join(os.path.dirname(__file__), "header.txt")).read()
src = header + f"""; @launch grid=(256,1,1) block=(512,1,1) lds={LDS_BYTES}
.amdgcn_target "amdgcn-amd-amdhsa--gfx950"
.text
.globl {NAME}_kernel
.p2align 8
.type {NAME}_kernel,@function
{NAME}_kernel:
{e.text()}    s_endpgm
.section .rodata,"a"
.p2align 6
.amdhsa_kernel {NAME}_kernel
  .amdhsa_next_free_vgpr 256
  .amdhsa_next_free_sgpr 102
  .amdhsa_accum_offset 128
  .amdhsa_group_segment_fixed_size 0
  .amdhsa_kernarg_size 56
  .amdhsa_user_sgpr_count 2
  .amdhsa_user_sgpr_kernarg_segment_ptr 1
  .amdhsa_system_sgpr_workgroup_id_x 1
.end_amdhsa_kernel
"""
out = OUTP[0] if OUTP else f"cdna_kernels/{NAME}.s"
if DIAG:
    src += "; STAMPS " + " ".join(STAMPS) + "\n"
open(out, "w").write(src)
print("wrote", out, "instr counts", e.count, file=sys.stderr)
```

```python
import sys, os
sys.path.insert(0, os.path.dirname(__file__))
from em import Em, R

NAME = "standalone__conformer_conv_module__speech"
DIAG = "--diag" in sys.argv
HDIAG = "--hdiag" in sys.argv
HNAMES = ["c0", "k0", "k2", "k4", "B0", "B1", "B2", "B4", "end"]
OUTP = [a for a in sys.argv[1:] if not a.startswith("--")]

PAGE = 8192
HBASE = 17 * PAGE
HS = 160
HW = 16 * HS
DUMMY = HBASE + 8 * HW
LDS_BYTES = 163840
ST0 = [(4, 6), (8, 7), (10, 12), (14, 13), (0, 2), (16, 3), (18, 6), (4, 7)]
WS_S = 0
WS_HALO = 8 << 20
WS_SFLAG = 9 << 20
WS_HFLAG = 10 << 20
WS_DIAG = 11 << 20
WS_BYTES = 16 << 20
OOB = 0x80000000
SPIN_LIMIT = 1 << 18

sX, sW1, sW2, sWS, sOUT, sDW, sDBG = "s[20:23]", "s[24:27]", "s[28:31]", "s[32:35]", "s[36:39]", "s[40:43]", "s[44:47]"
sW, sCG, sP, sM, sG, sMM, sB, sC0 = "s48", "s49", "s50", "s51", "s52", "s53", "s54", "s55"
sKC = [f"s{56+j}" for j in range(8)]
sW1024, sW2048, sT0, sT1, sT2, sT3 = "s64", "s65", "s66", "s67", "s68", "s69"
sRT = "s[70:71]"
sSB = "s72"
sFB = "s73"
sHD = "s74"
sHF = "s75"
sND = "s76"
sNF = "s77"
sLB = "s78"
sPB = "s79"
sNEEDH = "s80"
sCNT = "s81"
sW4096 = "s82"
sCMP = "s[84:85]"
sDG = "s86"
sST = [f"s[{88+2*i}:{89+2*i}]" for i in range(6)]
vL = "v1"
vXA = [f"v{2+i}" for i in range(4)]
vXB = [f"v{6+i}" for i in range(4)]
vDX, vDX0, vDW1, vDW2 = "v10", "v11", "v12", "v13"
vHW, vHP1, vHP2 = "v14", "v15", "v120"
ACC, E = 16, 32
AF = [48 + 4 * i for i in range(6)]
CW = 72
vFL, vPF = "v82", "v83"
CI = 84
CO = 96
TT = 104
UU = 112
SF = 116
vHR, vHR1, vHR2, vSR, vSO, vSA, vOUT = "v121", "v122", "v123", "v124", "v125", "v126", "v127"
vWT = ["v84", "v85", "v86"]
vWU = ["v10", "v11"]
vEP = "v[12:13]"
EPR = 0
LOG2E_NEG = "s83"
vDD, vDR = "v116", "v117"

e = Em()

def V(i, n=1): return R("v", i, n)
def A(i, n=1): return R("a", i, n)

EP0, EP1 = "v68", "v69"
POL0, POL1 = "v70", "v71"
AF = AF[:5]

STAMPS = []
def hstamp(name):
    i = 4 + HNAMES.index(name)
    e.wait_all(vm=False, ds=True)
    e.raw(f"s_memrealtime {sST[0]}", kind="smem")
    e.raw("s_waitcnt lgkmcnt(0)", kind="wait")
    e.valu("v_mov_b32 v110, s88", "v110", [])
    e.vstore("buffer_atomic_umax", "v110", vFL, sDBG, "s92", off=4 * i)
def stamp(name):
    if HDIAG and name in HNAMES:
        hstamp(name)
    if not DIAG:
        return
    STAMPS.append(str(name)); i = 2 + len(STAMPS)
    e.wait_all(vm=False, ds=True)
    e.raw(f"s_memtime {sST[0]}", kind="smem")
    e.raw("s_waitcnt lgkmcnt(0)", kind="wait")
    e.valu(f"v_mov_b32 v110, {sST[0].replace('[88:89]','88')}", "v110", [])
    e.vstore("buffer_store_dword", "v110", vFL, sWS, sDG, off=4 * i)

e.salu("s_cmp_ge_u32 s2, 256")
e.raw("s_cbranch_scc1 L_end", kind="branch")
e.raw("s_load_dwordx8 s[4:11], s[0:1], 0", kind="smem")
e.raw("s_load_dwordx4 s[12:15], s[0:1], 32", kind="smem")
e.raw("s_load_dwordx2 s[16:17], s[0:1], 48", kind="smem")
e.raw(f"s_memrealtime {sRT}", kind="smem")
if DIAG:
    e.raw(f"s_memtime {sST[1]}", kind="smem")
e.valu("v_lshrrev_b32 v104, 6, v0", "v104", "v0")
e.valu(f"v_and_b32 {vL}, 63, v0", vL, "v0")
e.rfl(sW, "v104")
e.salu(f"s_and_b32 {sT0}, s2, 7", sT0)
e.salu(f"s_lshr_b32 {sT1}, s2, 3", sT1)
e.salu(f"s_and_b32 {sG}, {sT1}, 7", sG, sT1)
e.salu(f"s_lshr_b32 {sT1}, {sT1}, 3", sT1, sT1)
e.salu(f"s_lshl_b32 {sM}, {sT0}, 2", sM, sT0)
e.salu(f"s_add_u32 {sM}, {sM}, {sT1}", sM, [sM, sT1])
e.salu(f"s_and_b32 {sMM}, {sM}, 15", sMM, sM)
e.salu(f"s_lshr_b32 {sB}, {sM}, 4", sB, sM)
e.salu(f"s_lshl_b32 {sT1}, {sT1}, 1", sT1, sT1)
e.salu(f"s_add_u32 {sC0}, {sG}, {sT1}", sC0, [sG, sT1])
e.salu(f"s_and_b32 {sCG}, {sW}, 3", sCG, sW)
e.salu(f"s_lshr_b32 {sP}, {sW}, 2", sP, sW)
e.salu(f"s_lshl_b32 {sW1024}, {sW}, 10", sW1024, sW)
e.salu(f"s_lshl_b32 {sW2048}, {sW}, 11", sW2048, sW)
for j in range(8):
    e.salu(f"s_add_u32 {sKC[j]}, {sC0}, {j}", sKC[j], sC0)
    e.salu(f"s_and_b32 {sKC[j]}, {sKC[j]}, 7", sKC[j], sKC[j])
    e.salu(f"s_lshl_b32 {sKC[j]}, {sKC[j]}, 7", sKC[j], sKC[j])
e.valu(f"v_lshrrev_b32 v104, 4, {vL}", "v104", vL)
e.valu(f"v_and_b32 v105, 7, {vL}", "v105", vL)
e.valu("v_lshlrev_b32 v106, 1, v104", "v106", "v104")
e.valu("v_xor_b32 v106, v106, v105", "v106", ["v106", "v105"])
e.valu("v_lshlrev_b32 v106, 4, v106", "v106", "v106")
e.valu(f"v_bfe_u32 v107, {vL}, 3, 1", "v107", vL)
e.valu("v_lshl_add_u32 v106, v107, 10, v106", "v106", ["v107", "v106"])
e.valu("v_lshl_add_u32 v106, v104, 11, v106", "v106", ["v104", "v106"])
e.salu(f"s_lshl_b32 {sT0}, {sW}, 14", sT0, sW)
e.salu(f"s_lshl_b32 {sT1}, {sG}, 7", sT1, sG)
e.salu(f"s_add_u32 {sT0}, {sT0}, {sT1}", sT0, [sT0, sT1])
e.valu(f"v_add_u32 {vDW1}, {sT0}, v106", vDW1, [sT0, "v106"])
e.valu(f"v_lshrrev_b32 v104, 3, {vL}", "v104", vL)
e.salu(f"s_lshl_b32 {sT0}, {sCG}, 3", sT0, sCG)
e.valu(f"v_add_u32 v104, {sT0}, v104", "v104", [sT0, "v104"])
e.valu("v_bfe_u32 v106, v104, 1, 3", "v106", "v104")
e.valu("v_xor_b32 v106, v106, v105", "v106", ["v106", "v105"])
e.salu(f"s_lshl_b32 {sT0}, {sMM}, 8", sT0, sMM)
e.salu(f"s_lshl_b32 {sT1}, {sP}, 7", sT1, sP)
e.salu(f"s_add_u32 {sT0}, {sT0}, {sT1}", sT0, [sT0, sT1])
e.salu(f"s_sub_u32 {sT0}, {sT0}, 7", sT0, sT0)
e.valu(f"v_add_u32 v104, {sT0}, v104", "v104", [sT0, "v104"])
e.valu("v_lshlrev_b32 v107, 10, v104", "v107", "v104")
e.valu("v_lshl_add_u32 v107, v106, 4, v107", "v107", ["v106", "v107"])
e.valu("v_cmp_gt_i32 vcc, 0, v104", "vcc", "v104")
e.valu(f"v_mov_b32 v106, {hex(OOB)}", "v106", [])
e.valu(f"v_cndmask_b32 {vDX0}, v107, v106, vcc", vDX0, ["v107", "v106", "vcc"])
e.valu(f"v_add_u32 {vDX}, 0x8000, v107", vDX, "v107")
e.raw("s_waitcnt lgkmcnt(0)", kind="wait")
e.salu(f"s_mul_i32 {sT0}, {sB}, 4096000", sT0, sB)
e.salu("s_mov_b32 s24, s6", "s24"); e.salu("s_mov_b32 s25, s7", "s25")
e.salu("s_mov_b32 s26, 1048576", "s26"); e.salu("s_mov_b32 s27, 0x00020000", "s27")
e.salu(f"s_add_u32 s20, s4, {sT0}", "s20", sT0); e.salu("s_addc_u32 s21, s5, 0", "s21")
e.salu("s_mov_b32 s22, 4096000", "s22"); e.salu("s_mov_b32 s23, 0x00020000", "s23")

page_dma = {}

def dma_x(page, j, voff):
    e.salu(f"s_add_u32 m0, {sW1024}, {page*PAGE}", "m0", sW1024)
    page_dma[page] = e.dma(voff, sX, sKC[j])

def dma_w(page, j, which):
    sh, srd, voff, row4 = (10, sW1, vDW1, 8192) if which == 1 else (9, sW2, vDW2, 4096)
    e.salu(f"s_add_u32 m0, {sW2048}, {page*PAGE}", "m0", sW2048)
    e.salu(f"s_lshl_b32 {sT2}, {sKC[j]}, {sh}", sT2, sKC[j])
    e.dma(voff, srd, sT2)
    e.salu(f"s_add_u32 {sT3}, {sT2}, {row4-1024}", sT3, sT2)
    idx = e.dma(voff, srd, sT3, off=1024)
    page_dma[page] = idx; page_dma[page + 1] = idx

def dma_chunk(j):
    dma_w(ST0[j][0], j, 1)
    dma_x(ST0[j][1], j, vDX0)
for j in range(3):
    dma_chunk(j)

e.salu("s_mov_b32 s28, s10", "s28"); e.salu("s_mov_b32 s29, s11", "s29")
e.salu("s_mov_b32 s30, 524288", "s30"); e.salu("s_mov_b32 s31, 0x00020000", "s31")
e.salu("s_mov_b32 s32, s16", "s32"); e.salu("s_mov_b32 s33, s17", "s33")
e.salu(f"s_mov_b32 s34, {WS_BYTES}", "s34"); e.salu("s_mov_b32 s35, 0x00020000", "s35")
e.salu(f"s_add_u32 s36, s12, {sT0}", "s36", sT0); e.salu("s_addc_u32 s37, s13, 0", "s37")
e.salu("s_mov_b32 s38, 4096000", "s38"); e.salu("s_mov_b32 s39, 0x00020000", "s39")
e.salu("s_mov_b32 s40, s8", "s40"); e.salu("s_mov_b32 s41, s9", "s41")
e.salu("s_mov_b32 s42, 15360", "s42"); e.salu("s_mov_b32 s43, 0x00020000", "s43")
e.salu("s_mov_b32 s44, s14", "s44"); e.salu("s_mov_b32 s45, s15", "s45")
e.salu("s_mov_b32 s46, 256", "s46"); e.salu("s_mov_b32 s47, 0x00020000", "s47")
e.valu(f"v_mov_b32 v106, {hex(OOB)}", "v106", [])
e.valu(f"v_cmp_eq_u32 vcc, 0, {vL}", "vcc", vL)
e.valu(f"v_cndmask_b32 {vFL}, v106, {vL}, vcc", vFL, ["v106", vL, "vcc"])
e.salu("s_mov_b32 s91, s70", "s91", "s70")
e.salu("s_or_b32 s70, s70, 1", "s70", "s70")
e.salu("s_lshl_b32 s71, s2, 10", "s71")
e.valu("v_add_u32 v104, s71, v0", "v104", ["s71", "v0"])
e.valu("v_cmp_eq_u32 vcc, 0, v104", "vcc", "v104")
e.valu("v_cndmask_b32 v104, v106, v104, vcc", "v104", ["v106", "v104", "vcc"])
e.valu("v_mov_b32 v105, s70", "v105", "s70")
e.vstore("buffer_store_dword", "v105", "v104", sDBG, "0", flags=" sc1")
e.valu(f"v_lshrrev_b32 v104, 2, {vL}", "v104", vL)
e.valu(f"v_and_b32 v105, 3, {vL}", "v105", vL)
e.salu(f"s_lshl_b32 {sT0}, {sG}, 7", sT0, sG)
e.salu(f"s_lshl_b32 {sT1}, {sCG}, 5", sT1, sCG)
e.salu(f"s_add_u32 {sT0}, {sT0}, {sT1}", sT0, [sT0, sT1])
e.salu(f"s_sub_u32 {sT0}, {sT0}, 3072", sT0, sT0)
e.valu(f"v_lshrrev_b32 v106, 1, {vL}", "v106", vL)
e.valu(f"v_lshl_add_u32 v106, v106, 10, {sT0}", "v106", ["v106", sT0])
e.valu(f"v_and_b32 v107, 1, {vL}", "v107", vL)
e.valu(f"v_lshl_add_u32 {vDD}, v107, 4, v106", vDD, ["v107", "v106"])
e.salu(f"s_add_u32 {sT1}, {sW1024}, {16*PAGE + 96}", sT1, sW1024)
e.valu(f"v_lshl_add_u32 v106, v104, 1, {sT1}", "v106", ["v104", sT1])
e.valu("v_lshlrev_b32 v107, 5, v105", "v107", "v105")
e.valu(f"v_sub_u32 {vDR}, v106, v107", vDR, ["v106", "v107"])
e.salu(f"s_mov_b32 {LOG2E_NEG}, 0xbfb8aa3b", LOG2E_NEG)
dma_chunk(3)
e.salu(f"s_mul_i32 {sT0}, {sW}, {HW}", sT0, sW)
e.salu(f"s_add_u32 {sT0}, {sT0}, {HBASE}", sT0, sT0)
e.valu(f"v_mul_u32_u24 v106, {HS}, v104", "v106", "v104")
e.valu("v_lshl_add_u32 v106, v105, 4, v106", "v106", ["v105", "v106"])
e.valu(f"v_add_u32 {vHR}, {sT0}, v106", vHR, [sT0, "v106"])
e.valu(f"v_subrev_u32 v107, 128, {vHR}", "v107", vHR)
e.valu("v_cmp_eq_u32 vcc, 3, v105", "vcc", "v105")
e.valu(f"v_cndmask_b32 {vHR1}, {vHR}, v107, vcc", vHR1, [vHR, "v107", "vcc"])
e.valu("v_cmp_lt_u32 vcc, 1, v105", "vcc", "v105")
e.valu(f"v_cndmask_b32 {vHR2}, {vHR}, v107, vcc", vHR2, [vHR, "v107", "vcc"])
e.valu(f"v_and_b32 v106, 15, {vL}", "v106", vL)
e.valu(f"v_mul_u32_u24 v106, {HS}, v106", "v106", "v106")
e.valu(f"v_bfe_u32 v107, {vL}, 4, 1", "v107", vL)
e.valu("v_lshl_add_u32 v106, v107, 4, v106", "v106", ["v107", "v106"])
e.valu(f"v_lshrrev_b32 v108, 5, {vL}", "v108", vL)
e.valu("v_lshl_add_u32 v106, v108, 3, v106", "v106", ["v108", "v106"])
e.valu(f"v_add_u32 {vHW}, {sT0}, v106", vHW, [sT0, "v106"])
e.salu(f"s_cmp_eq_u32 {sP}, 0", "scc", sP)
e.salu(f"s_sub_u32 {sT1}, {sT0}, {4*HW - 128}", sT1, sT0)
e.salu(f"s_cmp_eq_u32 {sP}, 0", "scc", sP)
e.salu(f"s_cselect_b32 {sT1}, {DUMMY}, {sT1}", sT1, [sT1, "scc"])
e.valu(f"v_add_u32 {vHP1}, {sT1}, v106", vHP1, [sT1, "v106"])
e.salu(f"s_add_u32 {sT1}, {sT0}, 128", sT1, sT0)
e.salu(f"s_cmp_eq_u32 {sP}, 0", "scc", sP)
e.salu(f"s_cselect_b32 {sT1}, {DUMMY}, {sT1}", sT1, [sT1, "scc"])
e.valu(f"v_add_u32 {vHP2}, {sT1}, v106", vHP2, [sT1, "v106"])
e.valu(f"v_bfe_u32 v109, {vL}, 2, 2", "v109", vL)
e.valu("v_lshl_add_u32 v106, v108, 3, v109", "v106", ["v108", "v109"])
e.valu(f"v_mul_u32_u24 v106, {HS}, v106", "v106", "v106")
e.valu("v_lshl_add_u32 v106, v107, 5, v106", "v106", ["v107", "v106"])
e.valu("v_lshl_add_u32 v106, v105, 3, v106", "v106", ["v105", "v106"])
e.valu(f"v_add_u32 {vSR}, {sT0}, v106", vSR, [sT0, "v106"])
e.valu("v_lshl_add_u32 v106, v108, 3, v109", "v106", ["v108", "v109"])
e.valu("v_lshlrev_b32 v106, 8, v106", "v106", "v106")
e.valu("v_lshrrev_b32 v110, 1, v105", "v110", "v105")
e.salu(f"s_lshl_b32 {sT1}, {sCG}, 1", sT1, sCG)
e.valu(f"v_add_u32 v110, {sT1}, v110", "v110", [sT1, "v110"])
e.valu("v_lshlrev_b32 v111, 1, v109", "v111", "v109")
e.valu("v_xor_b32 v110, v110, v111", "v110", ["v110", "v111"])
e.valu("v_lshl_add_u32 v110, v110, 4, v106", "v110", ["v110", "v106"])
e.valu("v_lshl_add_u32 v110, v107, 7, v110", "v110", ["v107", "v110"])
e.valu("v_and_b32 v111, 1, v105", "v111", "v105")
e.valu(f"v_lshl_add_u32 {vWT[0]}, v111, 3, v110", vWT[0], ["v111", "v110"])
e.valu(f"v_add_u32 {vWT[1]}, 0x10000, {vWT[0]}", vWT[1], vWT[0])
e.valu(f"v_add_u32 {vWT[2]}, 0x20000, {vWT[0]}", vWT[2], vWT[0])
e.valu(f"v_xor_b32 v110, {sCG}, v109", "v110", [sCG, "v109"])
e.valu("v_lshl_add_u32 v110, v110, 6, v106", "v110", ["v110", "v106"])
e.valu("v_lshl_add_u32 v110, v111, 5, v110", "v110", ["v111", "v110"])
e.valu("v_lshl_add_u32 v110, v107, 4, v110", "v110", ["v107", "v110"])
e.valu("v_lshrrev_b32 v111, 1, v105", "v111", "v105")
e.valu("v_lshl_add_u32 v0, v111, 3, v110", "v0", ["v111", "v110"])
vWU = ["v0", "v11"]
e.valu(f"v_and_b32 v106, 31, {vL}", "v106", vL)
e.valu("v_bfe_u32 v110, v106, 1, 3", "v110", "v106")
e.valu("v_xor_b32 v110, v110, v108", "v110", ["v110", "v108"])
e.salu(f"s_lshl_b32 {sT1}, {sP}, 12", sT1, sP)
e.valu(f"v_lshl_add_u32 v106, v106, 7, {sT1}", "v106", ["v106", sT1])
for s_ in range(4):
    e.valu(f"v_xor_b32 v111, {2*s_}, v110", "v111", "v110")
    e.valu(f"v_lshl_add_u32 {vXA[s_]}, v111, 4, v106", vXA[s_], ["v111", "v106"])
    e.valu(f"v_add_u32 {vXB[s_]}, 0x10000, {vXA[s_]}", vXB[s_], vXA[s_])
e.valu(f"v_lshrrev_b32 v106, 4, {vL}", "v106", vL)
e.valu("v_xor_b32 v110, v109, v106", "v110", ["v109", "v106"])
e.valu("v_lshl_add_u32 v110, v110, 2, v105", "v110", ["v110", "v105"])
e.valu("v_lshlrev_b32 v110, 4, v110", "v110", "v110")
e.valu("v_lshl_add_u32 v110, v106, 10, v110", "v110", ["v106", "v110"])
e.salu(f"s_lshl_b32 {sT0}, {sW}, 13", sT0, sW)
e.salu(f"s_lshr_b32 {sT1}, {sG}, 1", sT1, sG)
e.salu(f"s_lshl_b32 {sT1}, {sT1}, 8", sT1, sT1)
e.salu(f"s_add_u32 {sT0}, {sT0}, {sT1}", sT0, [sT0, sT1])
e.valu(f"v_add_u32 {vDW2}, {sT0}, v110", vDW2, [sT0, "v110"])
e.salu(f"s_lshl_b32 {sT0}, {sCG}, 6", sT0, sCG)
e.salu(f"s_add_u32 {sT1}, {sT1}, {sT0}", sT1, [sT1, sT0])
e.salu(f"s_and_b32 {sT0}, {sG}, 1", sT0, sG)
e.salu(f"s_lshl_b32 {sT2}, {sT0}, 17", sT2, sT0)
e.salu(f"s_add_u32 {sT1}, {sT1}, {sT2}", sT1, [sT1, sT2])
e.salu(f"s_lshl_b32 {sT2}, {sMM}, 18", sT2, sMM)
e.salu(f"s_add_u32 {sT1}, {sT1}, {sT2}", sT1, [sT1, sT2])
e.salu(f"s_lshl_b32 {sT2}, {sP}, 15", sT2, sP)
e.salu(f"s_add_u32 {sT1}, {sT1}, {sT2}", sT1, [sT1, sT2])
e.valu(f"v_and_b32 v106, 31, {vL}", "v106", vL)
e.valu(f"v_lshl_add_u32 v106, v106, 10, {sT1}", "v106", ["v106", sT1])
e.valu(f"v_lshl_add_u32 {vOUT}, v108, 5, v106", vOUT, ["v108", "v106"])
e.valu(f"v_lshlrev_b32 {vSO}, 4, {vL}", vSO, vL)
e.salu(f"s_lshl_b32 {sT1}, {sP}, 15", sT1, sP)
e.valu(f"v_add_u32 {vSA}, {sT1}, {vSO}", vSA, [sT1, vSO])
e.valu(f"v_lshlrev_b32 v106, 3, v105", "v106", "v105")
e.valu(f"v_lshl_add_u32 v106, v104, 10, v106", "v106", ["v104", "v106"])
e.valu(f"v_mov_b32 v110, {hex(OOB)}", "v110", [])
e.valu(f"v_cmp_gt_u32 vcc, 8, {vL}", "vcc", vL)
e.valu(f"v_cndmask_b32 {vPF}, v110, v106, vcc", vPF, ["v110", "v106", "vcc"])
e.salu(f"s_lshl_b32 {sT1}, {sG}, 2", sT1, sG)
e.salu(f"s_add_u32 {sT1}, {sT1}, {sCG}", sT1, [sT1, sCG])
e.salu(f"s_lshl_b32 {sT2}, {sM}, 3", sT2, sM)
e.salu(f"s_lshl_b32 {sT3}, {sP}, 2", sT3, sP)
e.salu(f"s_add_u32 {sT3}, {sT3}, {sT2}", sT3, [sT3, sT2])
e.salu(f"s_lshl_b32 {sSB}, {sT3}, 5", sSB, sT3)
e.salu(f"s_add_u32 {sSB}, {sSB}, {sT1}", sSB, [sSB, sT1])
e.salu(f"s_lshl_b32 {sSB}, {sSB}, 10", sSB, sSB)
e.salu(f"s_lshl_b32 {sFB}, {sT3}, 3", sFB, sT3)
e.salu(f"s_add_u32 {sFB}, {sFB}, {sG}", sFB, [sFB, sG])
e.salu(f"s_lshl_b32 {sFB}, {sFB}, 7", sFB, sFB)
e.salu(f"s_lshl_b32 {sT3}, {sCG}, 3", sT3, sCG)
e.salu(f"s_add_u32 {sFB}, {sFB}, {sT3}", sFB, [sFB, sT3])
e.salu(f"s_add_u32 {sFB}, {sFB}, {WS_SFLAG}", sFB, sFB)
e.salu(f"s_lshl_b32 {sT3}, {sM}, 5", sT3, sM)
e.salu(f"s_add_u32 {sT3}, {sT3}, {sT1}", sT3, [sT3, sT1])
e.salu(f"s_lshl_b32 {sHD}, {sT3}, 9", sHD, sT3)
e.salu(f"s_add_u32 {sHD}, {sHD}, {WS_HALO}", sHD, sHD)
e.salu(f"s_add_u32 {sND}, {sHD}, {32*512}", sND, sHD)
e.salu(f"s_lshl_b32 {sHF}, {sT3}, 7", sHF, sT3)
e.salu(f"s_add_u32 {sHF}, {sHF}, {WS_HFLAG}", sHF, sHF)
e.salu(f"s_add_u32 {sNF}, {sHF}, {32*128}", sNF, sHF)
e.salu(f"s_cmp_eq_u32 {sP}, 0", "scc", sP)
e.salu(f"s_cselect_b32 {sHD}, {sHD}, {WS_BYTES}", sHD, [sHD, "scc"])
e.salu(f"s_cselect_b32 {sHF}, {sHF}, {WS_BYTES}", sHF, [sHF, "scc"])
e.salu(f"s_cmp_lg_u32 {sMM}, 15", "scc", sMM)
e.salu(f"s_cselect_b32 {sNEEDH}, {sP}, 0", sNEEDH, [sP, "scc"])
e.salu(f"s_add_u32 {sT1}, {sC0}, {sW}", sT1, [sC0, sW])
e.salu(f"s_and_b32 {sT1}, {sT1}, 7", sT1, sT1)
e.salu(f"s_lshl_b32 {sT3}, {sT0}, 2", sT3, sT0)
e.salu(f"s_add_u32 {sT3}, {sT3}, {sT2}", sT3, [sT3, sT2])
e.salu(f"s_lshl_b32 {sT3}, {sT3}, 3", sT3, sT3)
e.salu(f"s_add_u32 {sT3}, {sT3}, {sT1}", sT3, [sT3, sT1])
e.salu(f"s_lshl_b32 {sLB}, {sT3}, 12", sLB, sT3)
e.salu(f"s_lshl_b32 {sPB}, {sT3}, 7", sPB, sT3)
e.salu(f"s_add_u32 {sPB}, {sPB}, {WS_SFLAG}", sPB, sPB)
e.salu(f"s_lshl_b32 {sW4096}, {sW}, 12", sW4096, sW)
if DIAG:
    e.salu(f"s_lshl_b32 {sDG}, s2, 3", sDG)
    e.salu(f"s_add_u32 {sDG}, {sDG}, {sW}", sDG, [sDG, sW])
    e.salu(f"s_lshl_b32 {sDG}, {sDG}, 8", sDG, sDG)
    e.salu(f"s_add_u32 {sDG}, {sDG}, {WS_DIAG}", sDG, sDG)
    e.valu("v_mov_b32 v110, s90", "v110", [])
    e.vstore("buffer_store_dword", "v110", vFL, sWS, sDG, off=0)
    e.valu("v_mov_b32 v110, s70", "v110", [])
    e.vstore("buffer_store_dword", "v110", vFL, sWS, sDG, off=4)
if HDIAG:
    e.salu(f"s_lshl_b32 s92, {sW}, 9", "s92", sW)
    e.valu("v_not_b32 v110, s91", "v110", [])
    e.vstore("buffer_atomic_umax", "v110", vFL, sDBG, "s92", off=8)
    e.valu("v_mov_b32 v110, s91", "v110", [])
    e.vstore("buffer_atomic_umax", "v110", vFL, sDBG, "s92", off=12)
stamp('pro')

def barrier_with(pages, name=None):
    idx = max([page_dma[p] for p in pages], default=-1)
    if name: stamp(name + ".pre")
    if idx >= 0:
        e.wait_vm(idx)
    if name: stamp(name + ".vm")
    e.barrier()
    if name: stamp(name)

def x_read(dst, page, s_):
    base = vXA if page < 8 else vXB
    e.ds_read("ds_read_b128", V(dst, 4), base[s_], (page % 8) * PAGE)

def w_tr(bases, f, page, s_):
    for ee in range(2):
        addr = page * PAGE + 4096 * s_ + 1024 * ee
        e.ds_read("ds_read_b64_tr_b16", A(4 * f + 2 * ee, 2), bases[addr >> 16], addr & 0xffff)

def poll_check(mask, load, maskreg=None):
    ok = e.newlabel("L_ok"); lp = e.newlabel("L_poll")
    def chk():
        e.valu(f"v_cmp_eq_u32 vcc, {EP0}, {POL0}", "vcc", [EP0, POL0])
        e.valu(f"v_cmp_eq_u32 {sCMP}, {EP1}, {POL1}", sCMP, [EP1, POL1])
        e.nop(2)
        e.salu("s_and_b32 s84, s84, vcc_lo", "s84", ["s84", "vcc"])
        mk = maskreg if maskreg else str(mask)
        e.salu(f"s_and_b32 s84, s84, {mk}", "s84", "s84")
        e.salu(f"s_cmp_eq_u32 s84, {mk}", "scc", "s84")
        e.raw(f"s_cbranch_scc1 {ok}", kind="branch")
    chk()
    e.salu(f"s_mov_b32 {sCNT}, 0", sCNT)
    e.label(lp)
    e.raw("s_sleep 1", kind="other")
    e.raw(load, kind="other")
    e.raw("s_waitcnt vmcnt(0)", kind="wait")
    chk()
    e.salu(f"s_add_u32 {sCNT}, {sCNT}, 1", sCNT, sCNT)
    e.salu(f"s_cmp_lt_u32 {sCNT}, {SPIN_LIMIT}", "scc", sCNT)
    e.raw(f"s_cbranch_scc1 {lp}", kind="branch")
    e.label(ok)
    e.nop(2)

def poll_issue(voff, soff):
    e.vload("buffer_load_dwordx2", f"v[{POL0[1:]}:{POL1[1:]}]", voff, sWS, soff, flags=" sc1")
    return f"buffer_load_dwordx2 v[{POL0[1:]}:{POL1[1:]}], {voff}, {sWS}, {soff} offen sc1"

def glu_fillers(r, first=False):
    F = []
    slot = r % 2
    for gp in (0, 2):
        a = [E + 4 * gp + j for j in range(4)]
        b = [E + 4 * (gp + 1) + j for j in range(4)]
        for j in range(4):
            F.append((9, lambda a=a[j], b=b[j]: e.perm(V(a), V(b))))
        for j in range(4):
            F.append((4, lambda b=b[j]: e.valu(f"v_mul_f32 {V(b)}, {LOG2E_NEG}, {V(b)}", V(b), V(b))))
        for j in range(4):
            F.append((9, lambda b=b[j]: e.trans(f"v_exp_f32 {V(b)}, {V(b)}", V(b), V(b))))
        for j in range(4):
            F.append((4, lambda b=b[j]: e.valu(f"v_add_f32 {V(b)}, 1.0, {V(b)}", V(b), V(b))))
        for j in range(4):
            F.append((9, lambda b=b[j]: e.trans(f"v_rcp_f32 {V(b)}, {V(b)}", V(b), V(b))))
        for j in range(4):
            F.append((4, lambda a=a[j], b=b[j]: e.valu(f"v_mul_f32 {V(a)}, {V(a)}, {V(b)}", V(a), [V(a), V(b)])))
        u = UU + gp
        F.append((4, lambda a=a, u=u: e.valu(f"v_cvt_pk_bf16_f32 {V(u)}, {V(a[0])}, {V(a[1])}", V(u), [V(a[0]), V(a[1])])))
        F.append((4, lambda a=a, u=u: e.valu(f"v_cvt_pk_bf16_f32 {V(u+1)}, {V(a[2])}, {V(a[3])}", V(u + 1), [V(a[2]), V(a[3])])))
        F.append((1, lambda u=u, gp=gp: e.ds_write("ds_write_b64", vHW, V(u, 2), slot * 64 + gp * 16)))
        if first and gp == 0:
            F.append((1, lambda u=u: e.ds_write("ds_write_b64", vHP1, V(u, 2), 0)))
            def halo_store(u=u):
                e.valu(f"v_lshlrev_b32 v{TT}, 3, {vL}", V(TT), vL)
                st["halo_store"] = e.vstore("buffer_store_dwordx2", V(u, 2), V(TT), sWS, sHD, flags=" sc1")
            F.append((9, halo_store))
    return F

st = {}
def out_fillers(r):
    F = []
    slot = r % 2
    for u in range(3):
        if r == 1:
            base = [vHR, vHR1, vHR2][u]
        else:
            base = vHR
        F.append((1, lambda u=u, base=base: e.ds_read("ds_read_b128", V(CI + 4 * u, 4), base, slot * 64 + 16 * u)))
    def conv():
        for q in range(5):
            for o in range(2):
                d = V(CO + 4 * o, 4)
                e.m4(d, V(CW + 2 * q, 2), V(CI + 2 * (o + q), 2), d if q else "0")
    F.append((90, conv))
    for j in range(8):
        F.append((4, lambda j=j: e.valu(f"v_mul_f32 {V(TT+j)}, {LOG2E_NEG}, {V(CO+j)}", V(TT + j), V(CO + j))))
    for j in range(8):
        F.append((9, lambda j=j: e.trans(f"v_exp_f32 {V(TT+j)}, {V(TT+j)}", V(TT + j), V(TT + j))))
    for j in range(8):
        F.append((4, lambda j=j: e.valu(f"v_add_f32 {V(TT+j)}, 1.0, {V(TT+j)}", V(TT + j), V(TT + j))))
    for j in range(8):
        F.append((9, lambda j=j: e.trans(f"v_rcp_f32 {V(TT+j)}, {V(TT+j)}", V(TT + j), V(TT + j))))
    for j in range(8):
        F.append((4, lambda j=j: e.valu(f"v_mul_f32 {V(TT+j)}, {V(CO+j)}, {V(TT+j)}", V(TT + j), [V(CO + j), V(TT + j)])))
    for j in range(4):
        F.append((4, lambda j=j: e.valu(f"v_cvt_pk_bf16_f32 {V(UU+j)}, {V(TT+2*j)}, {V(TT+2*j+1)}", V(UU + j), [V(TT + 2 * j), V(TT + 2 * j + 1)])))
    F.append((1, lambda: e.ds_write("ds_write_b128", vHR, V(UU, 4), slot * 64)))
    for ee in range(2):
        F.append((1, lambda ee=ee: e.ds_read("ds_read_b64_tr_b16", V(SF + 2 * ee, 2), vSR, ee * 4 * HS + slot * 64)))
    F.append((12, lambda: None))
    def store():
        e.salu(f"s_add_u32 {sT2}, {sSB}, {r*32768}", sT2, sSB)
        st[("S", r)] = e.vstore("buffer_store_dwordx4", V(SF, 4), vSO, sWS, sT2, flags=" sc1")
    F.append((9, store))
    return F

def flag_store(idx_key, soff_reg, add):
    e.wait_vm(st[idx_key])
    if add:
        e.salu(f"s_add_u32 {sT2}, {soff_reg}, {add}", sT2, soff_reg)
        soff_reg = sT2
    e.vstore("buffer_store_dwordx2", f"v[{EP0[1:]}:{EP1[1:]}]", vFL, sWS, soff_reg, flags=" sc1")

class Ring:
    def __init__(self):
        self.reads = []
        self.avail = 0
        self.issued = 0
        self.used = 0
    def fill(self):
        while self.issued < min(self.avail, self.used + len(AF)):
            self.reads[self.issued](AF[self.issued % len(AF)])
            self.issued += 1
    def take(self):
        assert self.used < self.issued, "fragment not issued"
        r = AF[self.used % len(AF)]
        self.used += 1
        return r

ring = Ring()

def run_segment(mf, F, lead=0):
    n = len(mf)
    tot = sum(c for c, _ in F)
    done = 0; fi = 0
    for i in range(n):
        ring.fill()
        fr = ring.take()
        mf[i](fr)
        ring.fill()
        target = tot * (i + 1 + lead) / n
        while fi < len(F) and done < target:
            F[fi][1](); done += F[fi][0]; fi += 1
    while fi < len(F):
        F[fi][1](); fi += 1

def run_fillers(F):
    for c, f in F:
        f()

def g1_mfma(f):
    def m(fr):
        d = V(E, 16) if f == 31 else V(ACC, 16)
        e.m32(d, V(fr, 4), A(4 * f, 4), V(ACC, 16) if f else "0")
    return m

def g2_mfma(f):
    def m(fr):
        d = V(E, 16) if f == 31 else V(ACC, 16)
        e.m32(d, A(4 * f, 4), V(fr, 4), V(ACC, 16) if f else "0")
    return m

XQ = {1: [8, 9, 10, 11, 12, 13, 14, 15], 2: [0, 1, 2, 3, 4, 5, 6, 7], 3: [8, 9, 10, 11, 12, 13, 14, 15]}
def dma_dw():
    e.salu(f"s_add_u32 m0, {sW1024}, {16*PAGE}", "m0", sW1024)
    st["dw"] = e.dma(vDD, sDW, "0")
after = {
    0: lambda: dma_chunk(4),
    1: lambda: dma_chunk(5),
    2: lambda: dma_chunk(6),
    3: lambda: dma_chunk(7),
    4: lambda: (dma_x(8, 0, vDX), dma_x(9, 1, vDX), dma_x(10, 2, vDX)),
    5: lambda: (dma_x(11, 3, vDX), dma_x(12, 4, vDX), dma_x(13, 5, vDX)),
    6: lambda: (dma_x(14, 6, vDX), dma_x(15, 7, vDX), dma_dw(),
                e.valu(f"v_add_u32 {vDX}, 0x8000, {vDX}", vDX, vDX)),
    7: lambda: (dma_x(0, 0, vDX), dma_x(1, 1, vDX), dma_x(2, 2, vDX), dma_x(3, 3, vDX),
                e.vload("buffer_load_dword", EP0, vFL, sDBG, "0", flags=" sc1")),
}
for j in range(8):
    wp, xp = ST0[j]
    barrier_with([wp, wp + 1, xp], f"c{j}" if j in (0, 4) else None)
    for s_ in range(4):
        ring.reads.append(lambda dst, xp=xp, s_=s_: x_read(dst, xp, s_))
    ring.avail = len(ring.reads)
    for s_ in range(4):
        w_tr(vWT, 4 * j + s_, wp, s_)
        ring.fill()
    run_segment([g1_mfma(4 * j + s_) for s_ in range(4)], [])
    after[j]()

base_idx = len(ring.reads)
for s in (1, 2, 3):
    for j in range(8):
        for s_ in range(4):
            ring.reads.append(lambda dst, p=XQ[s][j], s_=s_: x_read(dst, p, s_))

def dma_group(k):
    F = []
    if k == 0:
        for j in range(4, 8):
            F.append((9, lambda j=j: dma_x(j, j, vDX)))
        F.append((4, lambda: e.valu(f"v_add_u32 {vDX}, 0x8000, {vDX}", vDX, vDX)))
    elif k == 1:
        for j in range(4):
            F.append((9, lambda j=j: dma_x(8 + j, j, vDX)))
    elif k == 2:
        for j in range(4, 8):
            F.append((9, lambda j=j: dma_x(8 + j, j, vDX)))
    else:
        for j in (2 * (k - 3), 2 * (k - 3) + 1):
            F.append((18, lambda j=j: dma_w(2 * j, j, 2)))
    return F

def merge(F1, F2):
    if not F1: return F2
    out = []; n1 = len(F1); n2 = len(F2); k = 0
    for i, f in enumerate(F1):
        while k < n2 and k * n1 <= i * n2:
            out.append(F2[k]); k += 1
        out.append(f)
    return out + F2[k:]

for k in range(6):
    s = 1 + k // 2; half = k % 2
    pages_now = XQ[s][4 * half: 4 * half + 4]
    need = list(pages_now)
    nxt = None
    if k >= 1 and k < 5:
        s2_, h2 = 1 + (k + 1) // 2, (k + 1) % 2
        nxt = XQ[s2_][4 * h2: 4 * h2 + 4]
        need += nxt
    if k == 5:
        need += [0, 1, 2, 3]
    barrier_with(need, f"k{k}")
    ring.avail = base_idx + 16 * (k + 1) + (16 if nxt else 0)
    pre = []
    if k == 1:
        ok = e.newlabel("L_eok"); lp = e.newlabel("L_ep")
        e.valu(f"v_cmp_ne_u32 vcc, 0, {EP0}", "vcc", EP0)
        e.nop(2)
        e.salu("s_and_b32 s84, vcc_lo, 1", "s84", "vcc")
        e.raw(f"s_cbranch_scc1 {ok}", kind="branch")
        e.salu(f"s_mov_b32 {sCNT}, 0", sCNT)
        e.label(lp)
        e.raw("s_sleep 1")
        e.raw(f"buffer_load_dword {EP0}, {vFL}, {sDBG}, 0 offen sc1")
        e.raw("s_waitcnt vmcnt(0)", kind="wait")
        e.valu(f"v_cmp_ne_u32 vcc, 0, {EP0}", "vcc", EP0)
        e.nop(2)
        e.salu("s_and_b32 s84, vcc_lo, 1", "s84", "vcc")
        e.raw(f"s_cbranch_scc1 {ok}", kind="branch")
        e.salu(f"s_add_u32 {sCNT}, {sCNT}, 1", sCNT, sCNT)
        e.salu(f"s_cmp_lt_u32 {sCNT}, {SPIN_LIMIT}", "scc", sCNT)
        e.raw(f"s_cbranch_scc1 {lp}", kind="branch")
        e.label(ok)
        e.nop(2)
        e.rfl("s70", EP0)
        e.valu(f"v_mov_b32 {EP0}, s70", EP0, "s70")
        e.valu(f"v_not_b32 {EP1}, s70", EP1, "s70")
    F = []
    if half == 0:
        F = glu_fillers(s - 1, first=(s == 1))
    elif s >= 2:
        F = out_fillers(s - 2)
    extra = dma_group(k)
    if k == 1:
        F = [(1, lambda: e.wait_vm(st["dw"]))]
        for n in range(20):
            F.append((1, lambda n=n: e.ds_read("ds_read_u16", V(CI + n), vDR, n * 32)))
        F.append((30, lambda: None))
        for n in range(10):
            F.append((4, lambda n=n: e.valu(f"v_lshl_or_b32 {V(CW+n)}, {V(CI+2*n+1)}, 16, {V(CI+2*n)}", V(CW + n), [V(CI + 2 * n + 1), V(CI + 2 * n)])))
    if k == 2:
        extra = [(9, lambda: flag_store("halo_store", sHF, 0))] + extra
    if k == 3:
        extra = [(9, lambda: st.__setitem__("hp", poll_issue(vFL, sNF)))] + extra
    if k == 4:
        def halo_get():
            poll_check(1, st["hp"], maskreg=sNEEDH)
            e.valu(f"v_lshlrev_b32 v{TT}, 3, {vL}", V(TT), vL)
            e.vload("buffer_load_dwordx2", V(SF, 2), V(TT), sWS, sND, flags=" sc1")
        extra = [(20, halo_get)] + extra
    if k == 5:
        extra = [(5, lambda: e.ds_write("ds_write_b64", vHP2, V(SF, 2), 0)),
                 (9, lambda: flag_store(("S", 0), sFB, 0)),
                 (4, lambda: e.valu(f"v_add_u32 {vWU[1]}, 0x10000, {vWU[0]}", vWU[1], vWU[0]))] + extra
        wl = [(1, lambda f=f: w_tr(vWU, f, 2 * (f // 4), f % 4)) for f in range(8)]
        extra = extra + wl + [(9, lambda: st.__setitem__("tp", poll_issue(vPF, sPB)))]
    F = merge(F, extra)
    run_segment([g1_mfma(16 * half + i) for i in range(16)], F)

def dma_T(i):
    for q in range(4):
        e.salu(f"s_add_u32 m0, {sW4096}, {i*4*PAGE + q*1024}", "m0", sW4096)
        e.salu(f"s_add_u32 {sT2}, {sLB}, {i*32768 + q*1024}", sT2, sLB)
        idx = e.dma(vSO, sWS, sT2, flags=" sc1")
    for p in range(4 * i, 4 * i + 4):
        page_dma[p] = idx

e.wait_all(vm=False, ds=True)
barrier_with([4, 5, 6, 7], "B0")
dma_w(12, 6, 2); dma_w(14, 7, 2)
G = glu_fillers(3)
run_fillers(G[:12])
stamp("t0a")
poll_check(0xF, st["tp"])
stamp("t0b")
dma_T(0)
wl = [(1, lambda f=f: w_tr(vWU, f, 2 * (f // 4), f % 4)) for f in range(8, 16)]
run_fillers(merge(G[12:], wl))
flag_store(("S", 1), sFB, 1024)
run_fillers(out_fillers(2))
e.wait_all(vm=False, ds=True)
barrier_with([8, 9, 10, 11], "B1")
wl = [(1, lambda f=f: w_tr(vWU, f, 2 * (f // 4), f % 4)) for f in range(16, 24)]
O3 = out_fillers(3)
run_fillers(merge(O3, wl))
stamp("o3")
flag_store(("S", 2), sFB, 2048)
tp = poll_issue(vPF, sPB)
flag_store(("S", 3), sFB, 3072)
stamp("f3")
poll_check(0xF0, tp)
stamp("t1")
dma_T(1)
e.wait_all(vm=False, ds=True)
barrier_with(list(range(16)), "B2")
t0 = len(ring.reads)
for f in range(32):
    ring.reads.append(lambda dst, f=f: e.ds_read("ds_read_b128", V(dst, 4), vSA, f * 1024))
ring.avail = len(ring.reads)
wl = [(1, lambda f=f: w_tr(vWU, f, 2 * (f // 4), f % 4)) for f in range(24, 32)]
run_segment([g2_mfma(f) for f in range(12)], wl, lead=4)
e.wait_ds(max(e.pend_ds.get(f"a{i}", -1) for i in range(96, 128)))
e.barrier()
e.salu(f"s_add_u32 {sPB}, {sPB}, 2048", sPB, sPB)
tp = poll_issue(vPF, sPB)
run_segment([g2_mfma(f) for f in range(12, 20)], [])
stamp('p23a')
poll_check(0xFF, tp)
stamp('p23b')
dma_T(2); dma_T(3)
run_segment([g2_mfma(f) for f in range(20, 32)], [])

def out_epilogue(second):
    for j in range(8):
        e.valu(f"v_cvt_pk_bf16_f32 {V(TT+j)}, {V(E+2*j)}, {V(E+2*j+1)}", V(TT + j), [V(E + 2 * j), V(E + 2 * j + 1)])
    e.vstore("buffer_store_dwordx4", V(TT, 4), vOUT, sOUT, "0")
    e.vstore("buffer_store_dwordx4", V(TT + 4, 4), vOUT, sOUT, "0", off=16)

e.valu(f"v_add_u32 {vSA}, 0x10000, {vSA}", vSA, vSA)
out_epilogue(False)
e.valu(f"v_add_u32 {vOUT}, 0x10000, {vOUT}", vOUT, vOUT)
barrier_with(list(range(8, 16)), "B4")
for f in range(32):
    ring.reads.append(lambda dst, f=f: e.ds_read("ds_read_b128", V(dst, 4), vSA, f * 1024))
ring.avail = len(ring.reads)
run_segment([g2_mfma(f) for f in range(32)], [])
stamp('g2end')
out_epilogue(True)
if HDIAG:
    e.wait_all()
    stamp('end')
if DIAG:
    e.wait_all()
    stamp('end')
    e.raw(f"s_memrealtime {sST[0]}", kind="smem")
    e.raw("s_waitcnt lgkmcnt(0)", kind="wait")
    e.valu("v_mov_b32 v110, s88", "v110", [])
    e.vstore("buffer_store_dword", "v110", vFL, sWS, sDG, off=8)
e.label("L_end")

header = open(os.path.join(os.path.dirname(__file__), "header.txt")).read()
src = header + f"""; @launch grid=(256,1,1) block=(512,1,1) lds={LDS_BYTES}
.amdgcn_target "amdgcn-amd-amdhsa--gfx950"
.text
.globl {NAME}_kernel
.p2align 8
.type {NAME}_kernel,@function
{NAME}_kernel:
{e.text()}    s_endpgm
.section .rodata,"a"
.p2align 6
.amdhsa_kernel {NAME}_kernel
  .amdhsa_next_free_vgpr 256
  .amdhsa_next_free_sgpr 102
  .amdhsa_accum_offset 128
  .amdhsa_group_segment_fixed_size 0
  .amdhsa_kernarg_size 56
  .amdhsa_user_sgpr_count 2
  .amdhsa_user_sgpr_kernarg_segment_ptr 1
  .amdhsa_system_sgpr_workgroup_id_x 1
.end_amdhsa_kernel
"""
out = OUTP[0] if OUTP else f"cdna_kernels/{NAME}.s"
if DIAG:
    src += "; STAMPS " + " ".join(STAMPS) + "\n"
open(out, "w").write(src)
print("wrote", out, "instr counts", e.count, file=sys.stderr)
```

```python
import sys, os
sys.path.insert(0, os.path.dirname(__file__))
from em import Em, R

NAME = "standalone__conformer_conv_module__speech"
DIAG = "--diag" in sys.argv
HDIAG = "--hdiag" in sys.argv
HNAMES = ["c0", "k0", "k2", "k4", "B0", "B1", "B2", "B4", "end"]
OUTP = [a for a in sys.argv[1:] if not a.startswith("--")]

PAGE = 8192
HBASE = 17 * PAGE
HS = 160
HW = 16 * HS
DUMMY = HBASE + 8 * HW
LDS_BYTES = 163840
ST0 = [(4, 6), (8, 7), (10, 12), (14, 13), (0, 2), (16, 3), (18, 6), (4, 7)]
WS_S = 0
WS_HALO = 8 << 20
WS_SFLAG = 9 << 20
WS_HFLAG = 10 << 20
WS_DIAG = 11 << 20
WS_BYTES = 16 << 20
OOB = 0x80000000
SPIN_LIMIT = 1 << 18

sX, sW1, sW2, sWS, sOUT, sDW, sDBG = "s[20:23]", "s[24:27]", "s[28:31]", "s[32:35]", "s[36:39]", "s[40:43]", "s[44:47]"
sW, sCG, sP, sM, sG, sMM, sB, sC0 = "s48", "s49", "s50", "s51", "s52", "s53", "s54", "s55"
sKC = [f"s{56+j}" for j in range(8)]
sW1024, sW2048, sT0, sT1, sT2, sT3 = "s64", "s65", "s66", "s67", "s68", "s69"
sRT = "s[70:71]"
sSB = "s72"
sFB = "s73"
sHD = "s74"
sHF = "s75"
sND = "s76"
sNF = "s77"
sLB = "s78"
sPB = "s79"
sNEEDH = "s80"
sCNT = "s81"
sW4096 = "s82"
sCMP = "s[84:85]"
sDG = "s86"
sST = [f"s[{88+2*i}:{89+2*i}]" for i in range(6)]
vL = "v1"
vXA = [f"v{2+i}" for i in range(4)]
vXB = [f"v{6+i}" for i in range(4)]
vDX, vDX0, vDW1, vDW2 = "v10", "v11", "v12", "v13"
vHW, vHP1, vHP2 = "v14", "v15", "v120"
ACC, E = 16, 32
AF = [48 + 4 * i for i in range(6)]
CW = 72
vFL, vPF = "v82", "v83"
CI = 84
CO = 96
TT = 104
UU = 112
SF = 116
vHR, vHR1, vHR2, vSR, vSO, vSA, vOUT = "v121", "v122", "v123", "v124", "v125", "v126", "v127"
vWT = ["v84", "v85", "v86"]
vWU = ["v10", "v11"]
vEP = "v[12:13]"
EPR = 0
LOG2E_NEG = "s83"
vDD, vDR = "v116", "v117"

e = Em()

def V(i, n=1): return R("v", i, n)
def A(i, n=1): return R("a", i, n)

EP0, EP1 = "v68", "v69"
POL0, POL1 = "v70", "v71"
AF = AF[:5]

STAMPS = []
def hstamp(name):
    i = HNAMES.index(name)
    e.wait_all(vm=False, ds=True)
    e.raw(f"s_memrealtime {sST[0]}", kind="smem")
    e.raw("s_waitcnt lgkmcnt(0)", kind="wait")
    e.salu(f"s_mov_b32 s{93+i}, s88", f"s{93+i}")
    if name == "end":
        e.salu(f"s_lshl_b32 s92, {sW}, 9", "s92", sW)
        e.valu("v_not_b32 v110, s91", "v110", [])
        e.vstore("buffer_atomic_umax", "v110", vFL, sDBG, "s92", off=8)
        e.valu("v_mov_b32 v111, s88", "v111", [])
        e.vstore("buffer_atomic_umax", "v111", vFL, sDBG, "s92", off=12)
        e.salu("s_cmp_eq_u32 s2, 100", "scc")
        e.salu("s_cselect_b32 s92, s92, 512", "s92", "s92")
        e.valu("v_mov_b32 v109, s91", "v109", [])
        e.vstore("buffer_store_dword", "v109", vFL, sDBG, "s92", off=16)
        for j in range(len(HNAMES)):
            e.valu(f"v_mov_b32 v{96+j}, s{93+j}", f"v{96+j}", [])
            e.vstore("buffer_store_dword", f"v{96+j}", vFL, sDBG, "s92", off=20 + 4 * j)
def stamp(name):
    if HDIAG and name in HNAMES:
        hstamp(name)
    if not DIAG:
        return
    STAMPS.append(str(name)); i = 2 + len(STAMPS)
    e.wait_all(vm=False, ds=True)
    e.raw(f"s_memtime {sST[0]}", kind="smem")
    e.raw("s_waitcnt lgkmcnt(0)", kind="wait")
    e.valu(f"v_mov_b32 v110, {sST[0].replace('[88:89]','88')}", "v110", [])
    e.vstore("buffer_store_dword", "v110", vFL, sWS, sDG, off=4 * i)

e.salu("s_cmp_ge_u32 s2, 256")
e.raw("s_cbranch_scc1 L_end", kind="branch")
e.raw("s_load_dwordx8 s[4:11], s[0:1], 0", kind="smem")
e.raw("s_load_dwordx4 s[12:15], s[0:1], 32", kind="smem")
e.raw("s_load_dwordx2 s[16:17], s[0:1], 48", kind="smem")
e.raw(f"s_memrealtime {sRT}", kind="smem")
if DIAG:
    e.raw(f"s_memtime {sST[1]}", kind="smem")
e.valu("v_lshrrev_b32 v104, 6, v0", "v104", "v0")
e.valu(f"v_and_b32 {vL}, 63, v0", vL, "v0")
e.rfl(sW, "v104")
e.salu(f"s_and_b32 {sT0}, s2, 7", sT0)
e.salu(f"s_lshr_b32 {sT1}, s2, 3", sT1)
e.salu(f"s_and_b32 {sG}, {sT1}, 7", sG, sT1)
e.salu(f"s_lshr_b32 {sT1}, {sT1}, 3", sT1, sT1)
e.salu(f"s_lshl_b32 {sM}, {sT0}, 2", sM, sT0)
e.salu(f"s_add_u32 {sM}, {sM}, {sT1}", sM, [sM, sT1])
e.salu(f"s_and_b32 {sMM}, {sM}, 15", sMM, sM)
e.salu(f"s_lshr_b32 {sB}, {sM}, 4", sB, sM)
e.salu(f"s_lshl_b32 {sT1}, {sT1}, 1", sT1, sT1)
e.salu(f"s_add_u32 {sC0}, {sG}, {sT1}", sC0, [sG, sT1])
e.salu(f"s_and_b32 {sCG}, {sW}, 3", sCG, sW)
e.salu(f"s_lshr_b32 {sP}, {sW}, 2", sP, sW)
e.salu(f"s_lshl_b32 {sW1024}, {sW}, 10", sW1024, sW)
e.salu(f"s_lshl_b32 {sW2048}, {sW}, 11", sW2048, sW)
for j in range(8):
    e.salu(f"s_add_u32 {sKC[j]}, {sC0}, {j}", sKC[j], sC0)
    e.salu(f"s_and_b32 {sKC[j]}, {sKC[j]}, 7", sKC[j], sKC[j])
    e.salu(f"s_lshl_b32 {sKC[j]}, {sKC[j]}, 7", sKC[j], sKC[j])
e.valu(f"v_lshrrev_b32 v104, 4, {vL}", "v104", vL)
e.valu(f"v_and_b32 v105, 7, {vL}", "v105", vL)
e.valu("v_lshlrev_b32 v106, 1, v104", "v106", "v104")
e.valu("v_xor_b32 v106, v106, v105", "v106", ["v106", "v105"])
e.valu("v_lshlrev_b32 v106, 4, v106", "v106", "v106")
e.valu(f"v_bfe_u32 v107, {vL}, 3, 1", "v107", vL)
e.valu("v_lshl_add_u32 v106, v107, 10, v106", "v106", ["v107", "v106"])
e.valu("v_lshl_add_u32 v106, v104, 11, v106", "v106", ["v104", "v106"])
e.salu(f"s_lshl_b32 {sT0}, {sW}, 14", sT0, sW)
e.salu(f"s_lshl_b32 {sT1}, {sG}, 7", sT1, sG)
e.salu(f"s_add_u32 {sT0}, {sT0}, {sT1}", sT0, [sT0, sT1])
e.valu(f"v_add_u32 {vDW1}, {sT0}, v106", vDW1, [sT0, "v106"])
e.valu(f"v_lshrrev_b32 v104, 3, {vL}", "v104", vL)
e.salu(f"s_lshl_b32 {sT0}, {sCG}, 3", sT0, sCG)
e.valu(f"v_add_u32 v104, {sT0}, v104", "v104", [sT0, "v104"])
e.valu("v_bfe_u32 v106, v104, 1, 3", "v106", "v104")
e.valu("v_xor_b32 v106, v106, v105", "v106", ["v106", "v105"])
e.salu(f"s_lshl_b32 {sT0}, {sMM}, 8", sT0, sMM)
e.salu(f"s_lshl_b32 {sT1}, {sP}, 7", sT1, sP)
e.salu(f"s_add_u32 {sT0}, {sT0}, {sT1}", sT0, [sT0, sT1])
e.salu(f"s_sub_u32 {sT0}, {sT0}, 7", sT0, sT0)
e.valu(f"v_add_u32 v104, {sT0}, v104", "v104", [sT0, "v104"])
e.valu("v_lshlrev_b32 v107, 10, v104", "v107", "v104")
e.valu("v_lshl_add_u32 v107, v106, 4, v107", "v107", ["v106", "v107"])
e.valu("v_cmp_gt_i32 vcc, 0, v104", "vcc", "v104")
e.valu(f"v_mov_b32 v106, {hex(OOB)}", "v106", [])
e.valu(f"v_cndmask_b32 {vDX0}, v107, v106, vcc", vDX0, ["v107", "v106", "vcc"])
e.valu(f"v_add_u32 {vDX}, 0x8000, v107", vDX, "v107")
e.raw("s_waitcnt lgkmcnt(0)", kind="wait")
e.salu(f"s_mul_i32 {sT0}, {sB}, 4096000", sT0, sB)
e.salu("s_mov_b32 s24, s6", "s24"); e.salu("s_mov_b32 s25, s7", "s25")
e.salu("s_mov_b32 s26, 1048576", "s26"); e.salu("s_mov_b32 s27, 0x00020000", "s27")
e.salu(f"s_add_u32 s20, s4, {sT0}", "s20", sT0); e.salu("s_addc_u32 s21, s5, 0", "s21")
e.salu("s_mov_b32 s22, 4096000", "s22"); e.salu("s_mov_b32 s23, 0x00020000", "s23")

page_dma = {}

def dma_x(page, j, voff):
    e.salu(f"s_add_u32 m0, {sW1024}, {page*PAGE}", "m0", sW1024)
    page_dma[page] = e.dma(voff, sX, sKC[j])

def dma_w(page, j, which):
    sh, srd, voff, row4 = (10, sW1, vDW1, 8192) if which == 1 else (9, sW2, vDW2, 4096)
    e.salu(f"s_add_u32 m0, {sW2048}, {page*PAGE}", "m0", sW2048)
    e.salu(f"s_lshl_b32 {sT2}, {sKC[j]}, {sh}", sT2, sKC[j])
    e.dma(voff, srd, sT2)
    e.salu(f"s_add_u32 {sT3}, {sT2}, {row4-1024}", sT3, sT2)
    idx = e.dma(voff, srd, sT3, off=1024)
    page_dma[page] = idx; page_dma[page + 1] = idx

def dma_chunk(j):
    dma_w(ST0[j][0], j, 1)
    dma_x(ST0[j][1], j, vDX0)
for j in range(3):
    dma_chunk(j)

e.salu("s_mov_b32 s28, s10", "s28"); e.salu("s_mov_b32 s29, s11", "s29")
e.salu("s_mov_b32 s30, 524288", "s30"); e.salu("s_mov_b32 s31, 0x00020000", "s31")
e.salu("s_mov_b32 s32, s16", "s32"); e.salu("s_mov_b32 s33, s17", "s33")
e.salu(f"s_mov_b32 s34, {WS_BYTES}", "s34"); e.salu("s_mov_b32 s35, 0x00020000", "s35")
e.salu(f"s_add_u32 s36, s12, {sT0}", "s36", sT0); e.salu("s_addc_u32 s37, s13, 0", "s37")
e.salu("s_mov_b32 s38, 4096000", "s38"); e.salu("s_mov_b32 s39, 0x00020000", "s39")
e.salu("s_mov_b32 s40, s8", "s40"); e.salu("s_mov_b32 s41, s9", "s41")
e.salu("s_mov_b32 s42, 15360", "s42"); e.salu("s_mov_b32 s43, 0x00020000", "s43")
e.salu("s_mov_b32 s44, s14", "s44"); e.salu("s_mov_b32 s45, s15", "s45")
e.salu("s_mov_b32 s46, 256", "s46"); e.salu("s_mov_b32 s47, 0x00020000", "s47")
e.valu(f"v_mov_b32 v106, {hex(OOB)}", "v106", [])
e.valu(f"v_cmp_eq_u32 vcc, 0, {vL}", "vcc", vL)
e.valu(f"v_cndmask_b32 {vFL}, v106, {vL}, vcc", vFL, ["v106", vL, "vcc"])
e.salu("s_mov_b32 s91, s70", "s91", "s70")
e.salu("s_or_b32 s70, s70, 1", "s70", "s70")
e.salu("s_lshl_b32 s71, s2, 10", "s71")
e.valu("v_add_u32 v104, s71, v0", "v104", ["s71", "v0"])
e.valu("v_cmp_eq_u32 vcc, 0, v104", "vcc", "v104")
e.valu("v_cndmask_b32 v104, v106, v104, vcc", "v104", ["v106", "v104", "vcc"])
e.valu("v_mov_b32 v105, s70", "v105", "s70")
e.vstore("buffer_store_dword", "v105", "v104", sDBG, "0", flags=" sc1")
e.valu(f"v_lshrrev_b32 v104, 2, {vL}", "v104", vL)
e.valu(f"v_and_b32 v105, 3, {vL}", "v105", vL)
e.salu(f"s_lshl_b32 {sT0}, {sG}, 7", sT0, sG)
e.salu(f"s_lshl_b32 {sT1}, {sCG}, 5", sT1, sCG)
e.salu(f"s_add_u32 {sT0}, {sT0}, {sT1}", sT0, [sT0, sT1])
e.salu(f"s_sub_u32 {sT0}, {sT0}, 3072", sT0, sT0)
e.valu(f"v_lshrrev_b32 v106, 1, {vL}", "v106", vL)
e.valu(f"v_lshl_add_u32 v106, v106, 10, {sT0}", "v106", ["v106", sT0])
e.valu(f"v_and_b32 v107, 1, {vL}", "v107", vL)
e.valu(f"v_lshl_add_u32 {vDD}, v107, 4, v106", vDD, ["v107", "v106"])
e.salu(f"s_add_u32 {sT1}, {sW1024}, {16*PAGE + 96}", sT1, sW1024)
e.valu(f"v_lshl_add_u32 v106, v104, 1, {sT1}", "v106", ["v104", sT1])
e.valu("v_lshlrev_b32 v107, 5, v105", "v107", "v105")
e.valu(f"v_sub_u32 {vDR}, v106, v107", vDR, ["v106", "v107"])
e.salu(f"s_mov_b32 {LOG2E_NEG}, 0xbfb8aa3b", LOG2E_NEG)
dma_chunk(3)
e.salu(f"s_mul_i32 {sT0}, {sW}, {HW}", sT0, sW)
e.salu(f"s_add_u32 {sT0}, {sT0}, {HBASE}", sT0, sT0)
e.valu(f"v_mul_u32_u24 v106, {HS}, v104", "v106", "v104")
e.valu("v_lshl_add_u32 v106, v105, 4, v106", "v106", ["v105", "v106"])
e.valu(f"v_add_u32 {vHR}, {sT0}, v106", vHR, [sT0, "v106"])
e.valu(f"v_subrev_u32 v107, 128, {vHR}", "v107", vHR)
e.valu("v_cmp_eq_u32 vcc, 3, v105", "vcc", "v105")
e.valu(f"v_cndmask_b32 {vHR1}, {vHR}, v107, vcc", vHR1, [vHR, "v107", "vcc"])
e.valu("v_cmp_lt_u32 vcc, 1, v105", "vcc", "v105")
e.valu(f"v_cndmask_b32 {vHR2}, {vHR}, v107, vcc", vHR2, [vHR, "v107", "vcc"])
e.valu(f"v_and_b32 v106, 15, {vL}", "v106", vL)
e.valu(f"v_mul_u32_u24 v106, {HS}, v106", "v106", "v106")
e.valu(f"v_bfe_u32 v107, {vL}, 4, 1", "v107", vL)
e.valu("v_lshl_add_u32 v106, v107, 4, v106", "v106", ["v107", "v106"])
e.valu(f"v_lshrrev_b32 v108, 5, {vL}", "v108", vL)
e.valu("v_lshl_add_u32 v106, v108, 3, v106", "v106", ["v108", "v106"])
e.valu(f"v_add_u32 {vHW}, {sT0}, v106", vHW, [sT0, "v106"])
e.salu(f"s_cmp_eq_u32 {sP}, 0", "scc", sP)
e.salu(f"s_sub_u32 {sT1}, {sT0}, {4*HW - 128}", sT1, sT0)
e.salu(f"s_cmp_eq_u32 {sP}, 0", "scc", sP)
e.salu(f"s_cselect_b32 {sT1}, {DUMMY}, {sT1}", sT1, [sT1, "scc"])
e.valu(f"v_add_u32 {vHP1}, {sT1}, v106", vHP1, [sT1, "v106"])
e.salu(f"s_add_u32 {sT1}, {sT0}, 128", sT1, sT0)
e.salu(f"s_cmp_eq_u32 {sP}, 0", "scc", sP)
e.salu(f"s_cselect_b32 {sT1}, {DUMMY}, {sT1}", sT1, [sT1, "scc"])
e.valu(f"v_add_u32 {vHP2}, {sT1}, v106", vHP2, [sT1, "v106"])
e.valu(f"v_bfe_u32 v109, {vL}, 2, 2", "v109", vL)
e.valu("v_lshl_add_u32 v106, v108, 3, v109", "v106", ["v108", "v109"])
e.valu(f"v_mul_u32_u24 v106, {HS}, v106", "v106", "v106")
e.valu("v_lshl_add_u32 v106, v107, 5, v106", "v106", ["v107", "v106"])
e.valu("v_lshl_add_u32 v106, v105, 3, v106", "v106", ["v105", "v106"])
e.valu(f"v_add_u32 {vSR}, {sT0}, v106", vSR, [sT0, "v106"])
e.valu("v_lshl_add_u32 v106, v108, 3, v109", "v106", ["v108", "v109"])
e.valu("v_lshlrev_b32 v106, 8, v106", "v106", "v106")
e.valu("v_lshrrev_b32 v110, 1, v105", "v110", "v105")
e.salu(f"s_lshl_b32 {sT1}, {sCG}, 1", sT1, sCG)
e.valu(f"v_add_u32 v110, {sT1}, v110", "v110", [sT1, "v110"])
e.valu("v_lshlrev_b32 v111, 1, v109", "v111", "v109")
e.valu("v_xor_b32 v110, v110, v111", "v110", ["v110", "v111"])
e.valu("v_lshl_add_u32 v110, v110, 4, v106", "v110", ["v110", "v106"])
e.valu("v_lshl_add_u32 v110, v107, 7, v110", "v110", ["v107", "v110"])
e.valu("v_and_b32 v111, 1, v105", "v111", "v105")
e.valu(f"v_lshl_add_u32 {vWT[0]}, v111, 3, v110", vWT[0], ["v111", "v110"])
e.valu(f"v_add_u32 {vWT[1]}, 0x10000, {vWT[0]}", vWT[1], vWT[0])
e.valu(f"v_add_u32 {vWT[2]}, 0x20000, {vWT[0]}", vWT[2], vWT[0])
e.valu(f"v_xor_b32 v110, {sCG}, v109", "v110", [sCG, "v109"])
e.valu("v_lshl_add_u32 v110, v110, 6, v106", "v110", ["v110", "v106"])
e.valu("v_lshl_add_u32 v110, v111, 5, v110", "v110", ["v111", "v110"])
e.valu("v_lshl_add_u32 v110, v107, 4, v110", "v110", ["v107", "v110"])
e.valu("v_lshrrev_b32 v111, 1, v105", "v111", "v105")
e.valu("v_lshl_add_u32 v0, v111, 3, v110", "v0", ["v111", "v110"])
vWU = ["v0", "v11"]
e.valu(f"v_and_b32 v106, 31, {vL}", "v106", vL)
e.valu("v_bfe_u32 v110, v106, 1, 3", "v110", "v106")
e.valu("v_xor_b32 v110, v110, v108", "v110", ["v110", "v108"])
e.salu(f"s_lshl_b32 {sT1}, {sP}, 12", sT1, sP)
e.valu(f"v_lshl_add_u32 v106, v106, 7, {sT1}", "v106", ["v106", sT1])
for s_ in range(4):
    e.valu(f"v_xor_b32 v111, {2*s_}, v110", "v111", "v110")
    e.valu(f"v_lshl_add_u32 {vXA[s_]}, v111, 4, v106", vXA[s_], ["v111", "v106"])
    e.valu(f"v_add_u32 {vXB[s_]}, 0x10000, {vXA[s_]}", vXB[s_], vXA[s_])
e.valu(f"v_lshrrev_b32 v106, 4, {vL}", "v106", vL)
e.valu("v_xor_b32 v110, v109, v106", "v110", ["v109", "v106"])
e.valu("v_lshl_add_u32 v110, v110, 2, v105", "v110", ["v110", "v105"])
e.valu("v_lshlrev_b32 v110, 4, v110", "v110", "v110")
e.valu("v_lshl_add_u32 v110, v106, 10, v110", "v110", ["v106", "v110"])
e.salu(f"s_lshl_b32 {sT0}, {sW}, 13", sT0, sW)
e.salu(f"s_lshr_b32 {sT1}, {sG}, 1", sT1, sG)
e.salu(f"s_lshl_b32 {sT1}, {sT1}, 8", sT1, sT1)
e.salu(f"s_add_u32 {sT0}, {sT0}, {sT1}", sT0, [sT0, sT1])
e.valu(f"v_add_u32 {vDW2}, {sT0}, v110", vDW2, [sT0, "v110"])
e.salu(f"s_lshl_b32 {sT0}, {sCG}, 6", sT0, sCG)
e.salu(f"s_add_u32 {sT1}, {sT1}, {sT0}", sT1, [sT1, sT0])
e.salu(f"s_and_b32 {sT0}, {sG}, 1", sT0, sG)
e.salu(f"s_lshl_b32 {sT2}, {sT0}, 17", sT2, sT0)
e.salu(f"s_add_u32 {sT1}, {sT1}, {sT2}", sT1, [sT1, sT2])
e.salu(f"s_lshl_b32 {sT2}, {sMM}, 18", sT2, sMM)
e.salu(f"s_add_u32 {sT1}, {sT1}, {sT2}", sT1, [sT1, sT2])
e.salu(f"s_lshl_b32 {sT2}, {sP}, 15", sT2, sP)
e.salu(f"s_add_u32 {sT1}, {sT1}, {sT2}", sT1, [sT1, sT2])
e.valu(f"v_and_b32 v106, 31, {vL}", "v106", vL)
e.valu(f"v_lshl_add_u32 v106, v106, 10, {sT1}", "v106", ["v106", sT1])
e.valu(f"v_lshl_add_u32 {vOUT}, v108, 5, v106", vOUT, ["v108", "v106"])
e.valu(f"v_lshlrev_b32 {vSO}, 4, {vL}", vSO, vL)
e.salu(f"s_lshl_b32 {sT1}, {sP}, 15", sT1, sP)
e.valu(f"v_add_u32 {vSA}, {sT1}, {vSO}", vSA, [sT1, vSO])
e.valu(f"v_lshlrev_b32 v106, 3, v105", "v106", "v105")
e.valu(f"v_lshl_add_u32 v106, v104, 10, v106", "v106", ["v104", "v106"])
e.valu(f"v_mov_b32 v110, {hex(OOB)}", "v110", [])
e.valu(f"v_cmp_gt_u32 vcc, 8, {vL}", "vcc", vL)
e.valu(f"v_cndmask_b32 {vPF}, v110, v106, vcc", vPF, ["v110", "v106", "vcc"])
e.salu(f"s_lshl_b32 {sT1}, {sG}, 2", sT1, sG)
e.salu(f"s_add_u32 {sT1}, {sT1}, {sCG}", sT1, [sT1, sCG])
e.salu(f"s_lshl_b32 {sT2}, {sM}, 3", sT2, sM)
e.salu(f"s_lshl_b32 {sT3}, {sP}, 2", sT3, sP)
e.salu(f"s_add_u32 {sT3}, {sT3}, {sT2}", sT3, [sT3, sT2])
e.salu(f"s_lshl_b32 {sSB}, {sT3}, 5", sSB, sT3)
e.salu(f"s_add_u32 {sSB}, {sSB}, {sT1}", sSB, [sSB, sT1])
e.salu(f"s_lshl_b32 {sSB}, {sSB}, 10", sSB, sSB)
e.salu(f"s_lshl_b32 {sFB}, {sT3}, 3", sFB, sT3)
e.salu(f"s_add_u32 {sFB}, {sFB}, {sG}", sFB, [sFB, sG])
e.salu(f"s_lshl_b32 {sFB}, {sFB}, 7", sFB, sFB)
e.salu(f"s_lshl_b32 {sT3}, {sCG}, 3", sT3, sCG)
e.salu(f"s_add_u32 {sFB}, {sFB}, {sT3}", sFB, [sFB, sT3])
e.salu(f"s_add_u32 {sFB}, {sFB}, {WS_SFLAG}", sFB, sFB)
e.salu(f"s_lshl_b32 {sT3}, {sM}, 5", sT3, sM)
e.salu(f"s_add_u32 {sT3}, {sT3}, {sT1}", sT3, [sT3, sT1])
e.salu(f"s_lshl_b32 {sHD}, {sT3}, 9", sHD, sT3)
e.salu(f"s_add_u32 {sHD}, {sHD}, {WS_HALO}", sHD, sHD)
e.salu(f"s_add_u32 {sND}, {sHD}, {32*512}", sND, sHD)
e.salu(f"s_lshl_b32 {sHF}, {sT3}, 7", sHF, sT3)
e.salu(f"s_add_u32 {sHF}, {sHF}, {WS_HFLAG}", sHF, sHF)
e.salu(f"s_add_u32 {sNF}, {sHF}, {32*128}", sNF, sHF)
e.salu(f"s_cmp_eq_u32 {sP}, 0", "scc", sP)
e.salu(f"s_cselect_b32 {sHD}, {sHD}, {WS_BYTES}", sHD, [sHD, "scc"])
e.salu(f"s_cselect_b32 {sHF}, {sHF}, {WS_BYTES}", sHF, [sHF, "scc"])
e.salu(f"s_cmp_lg_u32 {sMM}, 15", "scc", sMM)
e.salu(f"s_cselect_b32 {sNEEDH}, {sP}, 0", sNEEDH, [sP, "scc"])
e.salu(f"s_add_u32 {sT1}, {sC0}, {sW}", sT1, [sC0, sW])
e.salu(f"s_and_b32 {sT1}, {sT1}, 7", sT1, sT1)
e.salu(f"s_lshl_b32 {sT3}, {sT0}, 2", sT3, sT0)
e.salu(f"s_add_u32 {sT3}, {sT3}, {sT2}", sT3, [sT3, sT2])
e.salu(f"s_lshl_b32 {sT3}, {sT3}, 3", sT3, sT3)
e.salu(f"s_add_u32 {sT3}, {sT3}, {sT1}", sT3, [sT3, sT1])
e.salu(f"s_lshl_b32 {sLB}, {sT3}, 12", sLB, sT3)
e.salu(f"s_lshl_b32 {sPB}, {sT3}, 7", sPB, sT3)
e.salu(f"s_add_u32 {sPB}, {sPB}, {WS_SFLAG}", sPB, sPB)
e.salu(f"s_lshl_b32 {sW4096}, {sW}, 12", sW4096, sW)
if DIAG:
    e.salu(f"s_lshl_b32 {sDG}, s2, 3", sDG)
    e.salu(f"s_add_u32 {sDG}, {sDG}, {sW}", sDG, [sDG, sW])
    e.salu(f"s_lshl_b32 {sDG}, {sDG}, 8", sDG, sDG)
    e.salu(f"s_add_u32 {sDG}, {sDG}, {WS_DIAG}", sDG, sDG)
    e.valu("v_mov_b32 v110, s90", "v110", [])
    e.vstore("buffer_store_dword", "v110", vFL, sWS, sDG, off=0)
    e.valu("v_mov_b32 v110, s70", "v110", [])
    e.vstore("buffer_store_dword", "v110", vFL, sWS, sDG, off=4)
stamp('pro')

def barrier_with(pages, name=None):
    idx = max([page_dma[p] for p in pages], default=-1)
    if name: stamp(name + ".pre")
    if idx >= 0:
        e.wait_vm(idx)
    if name: stamp(name + ".vm")
    e.barrier()
    if name: stamp(name)

def x_read(dst, page, s_):
    base = vXA if page < 8 else vXB
    e.ds_read("ds_read_b128", V(dst, 4), base[s_], (page % 8) * PAGE)

def w_tr(bases, f, page, s_):
    for ee in range(2):
        addr = page * PAGE + 4096 * s_ + 1024 * ee
        e.ds_read("ds_read_b64_tr_b16", A(4 * f + 2 * ee, 2), bases[addr >> 16], addr & 0xffff)

def poll_check(mask, load, maskreg=None):
    ok = e.newlabel("L_ok"); lp = e.newlabel("L_poll")
    def chk():
        e.valu(f"v_cmp_eq_u32 vcc, {EP0}, {POL0}", "vcc", [EP0, POL0])
        e.valu(f"v_cmp_eq_u32 {sCMP}, {EP1}, {POL1}", sCMP, [EP1, POL1])
        e.nop(2)
        e.salu("s_and_b32 s84, s84, vcc_lo", "s84", ["s84", "vcc"])
        mk = maskreg if maskreg else str(mask)
        e.salu(f"s_and_b32 s84, s84, {mk}", "s84", "s84")
        e.salu(f"s_cmp_eq_u32 s84, {mk}", "scc", "s84")
        e.raw(f"s_cbranch_scc1 {ok}", kind="branch")
    chk()
    e.salu(f"s_mov_b32 {sCNT}, 0", sCNT)
    e.label(lp)
    e.raw("s_sleep 1", kind="other")
    e.raw(load, kind="other")
    e.raw("s_waitcnt vmcnt(0)", kind="wait")
    chk()
    e.salu(f"s_add_u32 {sCNT}, {sCNT}, 1", sCNT, sCNT)
    e.salu(f"s_cmp_lt_u32 {sCNT}, {SPIN_LIMIT}", "scc", sCNT)
    e.raw(f"s_cbranch_scc1 {lp}", kind="branch")
    e.label(ok)
    e.nop(2)

def poll_issue(voff, soff):
    e.vload("buffer_load_dwordx2", f"v[{POL0[1:]}:{POL1[1:]}]", voff, sWS, soff, flags=" sc1")
    return f"buffer_load_dwordx2 v[{POL0[1:]}:{POL1[1:]}], {voff}, {sWS}, {soff} offen sc1"

def glu_fillers(r, first=False):
    F = []
    slot = r % 2
    for gp in (0, 2):
        a = [E + 4 * gp + j for j in range(4)]
        b = [E + 4 * (gp + 1) + j for j in range(4)]
        for j in range(4):
            F.append((9, lambda a=a[j], b=b[j]: e.perm(V(a), V(b))))
        for j in range(4):
            F.append((4, lambda b=b[j]: e.valu(f"v_mul_f32 {V(b)}, {LOG2E_NEG}, {V(b)}", V(b), V(b))))
        for j in range(4):
            F.append((9, lambda b=b[j]: e.trans(f"v_exp_f32 {V(b)}, {V(b)}", V(b), V(b))))
        for j in range(4):
            F.append((4, lambda b=b[j]: e.valu(f"v_add_f32 {V(b)}, 1.0, {V(b)}", V(b), V(b))))
        for j in range(4):
            F.append((9, lambda b=b[j]: e.trans(f"v_rcp_f32 {V(b)}, {V(b)}", V(b), V(b))))
        for j in range(4):
            F.append((4, lambda a=a[j], b=b[j]: e.valu(f"v_mul_f32 {V(a)}, {V(a)}, {V(b)}", V(a), [V(a), V(b)])))
        u = UU + gp
        F.append((4, lambda a=a, u=u: e.valu(f"v_cvt_pk_bf16_f32 {V(u)}, {V(a[0])}, {V(a[1])}", V(u), [V(a[0]), V(a[1])])))
        F.append((4, lambda a=a, u=u: e.valu(f"v_cvt_pk_bf16_f32 {V(u+1)}, {V(a[2])}, {V(a[3])}", V(u + 1), [V(a[2]), V(a[3])])))
        F.append((1, lambda u=u, gp=gp: e.ds_write("ds_write_b64", vHW, V(u, 2), slot * 64 + gp * 16)))
        if first and gp == 0:
            F.append((1, lambda u=u: e.ds_write("ds_write_b64", vHP1, V(u, 2), 0)))
            def halo_store(u=u):
                e.valu(f"v_lshlrev_b32 v{TT}, 3, {vL}", V(TT), vL)
                st["halo_store"] = e.vstore("buffer_store_dwordx2", V(u, 2), V(TT), sWS, sHD, flags=" sc1")
            F.append((9, halo_store))
    return F

st = {}
def out_fillers(r):
    F = []
    slot = r % 2
    for u in range(3):
        if r == 1:
            base = [vHR, vHR1, vHR2][u]
        else:
            base = vHR
        F.append((1, lambda u=u, base=base: e.ds_read("ds_read_b128", V(CI + 4 * u, 4), base, slot * 64 + 16 * u)))
    def conv():
        for q in range(5):
            for o in range(2):
                d = V(CO + 4 * o, 4)
                e.m4(d, V(CW + 2 * q, 2), V(CI + 2 * (o + q), 2), d if q else "0")
    F.append((90, conv))
    for j in range(8):
        F.append((4, lambda j=j: e.valu(f"v_mul_f32 {V(TT+j)}, {LOG2E_NEG}, {V(CO+j)}", V(TT + j), V(CO + j))))
    for j in range(8):
        F.append((9, lambda j=j: e.trans(f"v_exp_f32 {V(TT+j)}, {V(TT+j)}", V(TT + j), V(TT + j))))
    for j in range(8):
        F.append((4, lambda j=j: e.valu(f"v_add_f32 {V(TT+j)}, 1.0, {V(TT+j)}", V(TT + j), V(TT + j))))
    for j in range(8):
        F.append((9, lambda j=j: e.trans(f"v_rcp_f32 {V(TT+j)}, {V(TT+j)}", V(TT + j), V(TT + j))))
    for j in range(8):
        F.append((4, lambda j=j: e.valu(f"v_mul_f32 {V(TT+j)}, {V(CO+j)}, {V(TT+j)}", V(TT + j), [V(CO + j), V(TT + j)])))
    for j in range(4):
        F.append((4, lambda j=j: e.valu(f"v_cvt_pk_bf16_f32 {V(UU+j)}, {V(TT+2*j)}, {V(TT+2*j+1)}", V(UU + j), [V(TT + 2 * j), V(TT + 2 * j + 1)])))
    F.append((1, lambda: e.ds_write("ds_write_b128", vHR, V(UU, 4), slot * 64)))
    for ee in range(2):
        F.append((1, lambda ee=ee: e.ds_read("ds_read_b64_tr_b16", V(SF + 2 * ee, 2), vSR, ee * 4 * HS + slot * 64)))
    F.append((12, lambda: None))
    def store():
        e.salu(f"s_add_u32 {sT2}, {sSB}, {r*32768}", sT2, sSB)
        st[("S", r)] = e.vstore("buffer_store_dwordx4", V(SF, 4), vSO, sWS, sT2, flags=" sc1")
    F.append((9, store))
    return F

def flag_store(idx_key, soff_reg, add):
    e.wait_vm(st[idx_key])
    if add:
        e.salu(f"s_add_u32 {sT2}, {soff_reg}, {add}", sT2, soff_reg)
        soff_reg = sT2
    e.vstore("buffer_store_dwordx2", f"v[{EP0[1:]}:{EP1[1:]}]", vFL, sWS, soff_reg, flags=" sc1")

class Ring:
    def __init__(self):
        self.reads = []
        self.avail = 0
        self.issued = 0
        self.used = 0
    def fill(self):
        while self.issued < min(self.avail, self.used + len(AF)):
            self.reads[self.issued](AF[self.issued % len(AF)])
            self.issued += 1
    def take(self):
        assert self.used < self.issued, "fragment not issued"
        r = AF[self.used % len(AF)]
        self.used += 1
        return r

ring = Ring()

def run_segment(mf, F, lead=0):
    n = len(mf)
    tot = sum(c for c, _ in F)
    done = 0; fi = 0
    for i in range(n):
        ring.fill()
        fr = ring.take()
        mf[i](fr)
        ring.fill()
        target = tot * (i + 1 + lead) / n
        while fi < len(F) and done < target:
            F[fi][1](); done += F[fi][0]; fi += 1
    while fi < len(F):
        F[fi][1](); fi += 1

def run_fillers(F):
    for c, f in F:
        f()

def g1_mfma(f):
    def m(fr):
        d = V(E, 16) if f == 31 else V(ACC, 16)
        e.m32(d, V(fr, 4), A(4 * f, 4), V(ACC, 16) if f else "0")
    return m

def g2_mfma(f):
    def m(fr):
        d = V(E, 16) if f == 31 else V(ACC, 16)
        e.m32(d, A(4 * f, 4), V(fr, 4), V(ACC, 16) if f else "0")
    return m

XQ = {1: [8, 9, 10, 11, 12, 13, 14, 15], 2: [0, 1, 2, 3, 4, 5, 6, 7], 3: [8, 9, 10, 11, 12, 13, 14, 15]}
def dma_dw():
    e.salu(f"s_add_u32 m0, {sW1024}, {16*PAGE}", "m0", sW1024)
    st["dw"] = e.dma(vDD, sDW, "0")
after = {
    0: lambda: dma_chunk(4),
    1: lambda: dma_chunk(5),
    2: lambda: dma_chunk(6),
    3: lambda: dma_chunk(7),
    4: lambda: (dma_x(8, 0, vDX), dma_x(9, 1, vDX), dma_x(10, 2, vDX)),
    5: lambda: (dma_x(11, 3, vDX), dma_x(12, 4, vDX), dma_x(13, 5, vDX)),
    6: lambda: (dma_x(14, 6, vDX), dma_x(15, 7, vDX), dma_dw(),
                e.valu(f"v_add_u32 {vDX}, 0x8000, {vDX}", vDX, vDX)),
    7: lambda: (dma_x(0, 0, vDX), dma_x(1, 1, vDX), dma_x(2, 2, vDX), dma_x(3, 3, vDX),
                e.vload("buffer_load_dword", EP0, vFL, sDBG, "0", flags=" sc1")),
}
for j in range(8):
    wp, xp = ST0[j]
    barrier_with([wp, wp + 1, xp], f"c{j}" if j in (0, 4) else None)
    for s_ in range(4):
        ring.reads.append(lambda dst, xp=xp, s_=s_: x_read(dst, xp, s_))
    ring.avail = len(ring.reads)
    for s_ in range(4):
        w_tr(vWT, 4 * j + s_, wp, s_)
        ring.fill()
    run_segment([g1_mfma(4 * j + s_) for s_ in range(4)], [])
    after[j]()

base_idx = len(ring.reads)
for s in (1, 2, 3):
    for j in range(8):
        for s_ in range(4):
            ring.reads.append(lambda dst, p=XQ[s][j], s_=s_: x_read(dst, p, s_))

def dma_group(k):
    F = []
    if k == 0:
        for j in range(4, 8):
            F.append((9, lambda j=j: dma_x(j, j, vDX)))
        F.append((4, lambda: e.valu(f"v_add_u32 {vDX}, 0x8000, {vDX}", vDX, vDX)))
    elif k == 1:
        for j in range(4):
            F.append((9, lambda j=j: dma_x(8 + j, j, vDX)))
    elif k == 2:
        for j in range(4, 8):
            F.append((9, lambda j=j: dma_x(8 + j, j, vDX)))
    else:
        for j in (2 * (k - 3), 2 * (k - 3) + 1):
            F.append((18, lambda j=j: dma_w(2 * j, j, 2)))
    return F

def merge(F1, F2):
    if not F1: return F2
    out = []; n1 = len(F1); n2 = len(F2); k = 0
    for i, f in enumerate(F1):
        while k < n2 and k * n1 <= i * n2:
            out.append(F2[k]); k += 1
        out.append(f)
    return out + F2[k:]

for k in range(6):
    s = 1 + k // 2; half = k % 2
    pages_now = XQ[s][4 * half: 4 * half + 4]
    need = list(pages_now)
    nxt = None
    if k >= 1 and k < 5:
        s2_, h2 = 1 + (k + 1) // 2, (k + 1) % 2
        nxt = XQ[s2_][4 * h2: 4 * h2 + 4]
        need += nxt
    if k == 5:
        need += [0, 1, 2, 3]
    barrier_with(need, f"k{k}")
    ring.avail = base_idx + 16 * (k + 1) + (16 if nxt else 0)
    pre = []
    if k == 1:
        ok = e.newlabel("L_eok"); lp = e.newlabel("L_ep")
        e.valu(f"v_cmp_ne_u32 vcc, 0, {EP0}", "vcc", EP0)
        e.nop(2)
        e.salu("s_and_b32 s84, vcc_lo, 1", "s84", "vcc")
        e.raw(f"s_cbranch_scc1 {ok}", kind="branch")
        e.salu(f"s_mov_b32 {sCNT}, 0", sCNT)
        e.label(lp)
        e.raw("s_sleep 1")
        e.raw(f"buffer_load_dword {EP0}, {vFL}, {sDBG}, 0 offen sc1")
        e.raw("s_waitcnt vmcnt(0)", kind="wait")
        e.valu(f"v_cmp_ne_u32 vcc, 0, {EP0}", "vcc", EP0)
        e.nop(2)
        e.salu("s_and_b32 s84, vcc_lo, 1", "s84", "vcc")
        e.raw(f"s_cbranch_scc1 {ok}", kind="branch")
        e.salu(f"s_add_u32 {sCNT}, {sCNT}, 1", sCNT, sCNT)
        e.salu(f"s_cmp_lt_u32 {sCNT}, {SPIN_LIMIT}", "scc", sCNT)
        e.raw(f"s_cbranch_scc1 {lp}", kind="branch")
        e.label(ok)
        e.nop(2)
        e.rfl("s70", EP0)
        e.valu(f"v_mov_b32 {EP0}, s70", EP0, "s70")
        e.valu(f"v_not_b32 {EP1}, s70", EP1, "s70")
    F = []
    if half == 0:
        F = glu_fillers(s - 1, first=(s == 1))
    elif s >= 2:
        F = out_fillers(s - 2)
    extra = dma_group(k)
    if k == 1:
        F = [(1, lambda: e.wait_vm(st["dw"]))]
        for n in range(20):
            F.append((1, lambda n=n: e.ds_read("ds_read_u16", V(CI + n), vDR, n * 32)))
        F.append((30, lambda: None))
        for n in range(10):
            F.append((4, lambda n=n: e.valu(f"v_lshl_or_b32 {V(CW+n)}, {V(CI+2*n+1)}, 16, {V(CI+2*n)}", V(CW + n), [V(CI + 2 * n + 1), V(CI + 2 * n)])))
    if k == 2:
        extra = [(9, lambda: flag_store("halo_store", sHF, 0))] + extra
    if k == 3:
        extra = [(9, lambda: st.__setitem__("hp", poll_issue(vFL, sNF)))] + extra
    if k == 4:
        def halo_get():
            poll_check(1, st["hp"], maskreg=sNEEDH)
            e.valu(f"v_lshlrev_b32 v{TT}, 3, {vL}", V(TT), vL)
            e.vload("buffer_load_dwordx2", V(SF, 2), V(TT), sWS, sND, flags=" sc1")
        extra = [(20, halo_get)] + extra
    if k == 5:
        extra = [(5, lambda: e.ds_write("ds_write_b64", vHP2, V(SF, 2), 0)),
                 (9, lambda: flag_store(("S", 0), sFB, 0)),
                 (4, lambda: e.valu(f"v_add_u32 {vWU[1]}, 0x10000, {vWU[0]}", vWU[1], vWU[0]))] + extra
        wl = [(1, lambda f=f: w_tr(vWU, f, 2 * (f // 4), f % 4)) for f in range(8)]
        extra = extra + wl + [(9, lambda: st.__setitem__("tp", poll_issue(vPF, sPB)))]
    F = merge(F, extra)
    run_segment([g1_mfma(16 * half + i) for i in range(16)], F)

def dma_T(i):
    for q in range(4):
        e.salu(f"s_add_u32 m0, {sW4096}, {i*4*PAGE + q*1024}", "m0", sW4096)
        e.salu(f"s_add_u32 {sT2}, {sLB}, {i*32768 + q*1024}", sT2, sLB)
        idx = e.dma(vSO, sWS, sT2, flags=" sc1")
    for p in range(4 * i, 4 * i + 4):
        page_dma[p] = idx

e.wait_all(vm=False, ds=True)
barrier_with([4, 5, 6, 7], "B0")
dma_w(12, 6, 2); dma_w(14, 7, 2)
G = glu_fillers(3)
run_fillers(G[:12])
stamp("t0a")
poll_check(0xF, st["tp"])
stamp("t0b")
dma_T(0)
wl = [(1, lambda f=f: w_tr(vWU, f, 2 * (f // 4), f % 4)) for f in range(8, 16)]
run_fillers(merge(G[12:], wl))
flag_store(("S", 1), sFB, 1024)
run_fillers(out_fillers(2))
e.wait_all(vm=False, ds=True)
barrier_with([8, 9, 10, 11], "B1")
wl = [(1, lambda f=f: w_tr(vWU, f, 2 * (f // 4), f % 4)) for f in range(16, 24)]
O3 = out_fillers(3)
run_fillers(merge(O3, wl))
stamp("o3")
flag_store(("S", 2), sFB, 2048)
tp = poll_issue(vPF, sPB)
flag_store(("S", 3), sFB, 3072)
stamp("f3")
poll_check(0xF0, tp)
stamp("t1")
dma_T(1)
e.wait_all(vm=False, ds=True)
barrier_with(list(range(16)), "B2")
t0 = len(ring.reads)
for f in range(32):
    ring.reads.append(lambda dst, f=f: e.ds_read("ds_read_b128", V(dst, 4), vSA, f * 1024))
ring.avail = len(ring.reads)
wl = [(1, lambda f=f: w_tr(vWU, f, 2 * (f // 4), f % 4)) for f in range(24, 32)]
run_segment([g2_mfma(f) for f in range(12)], wl, lead=4)
e.wait_ds(max(e.pend_ds.get(f"a{i}", -1) for i in range(96, 128)))
e.barrier()
e.salu(f"s_add_u32 {sPB}, {sPB}, 2048", sPB, sPB)
tp = poll_issue(vPF, sPB)
run_segment([g2_mfma(f) for f in range(12, 20)], [])
stamp('p23a')
poll_check(0xFF, tp)
stamp('p23b')
dma_T(2); dma_T(3)
run_segment([g2_mfma(f) for f in range(20, 32)], [])

def out_epilogue(second):
    for j in range(8):
        e.valu(f"v_cvt_pk_bf16_f32 {V(TT+j)}, {V(E+2*j)}, {V(E+2*j+1)}", V(TT + j), [V(E + 2 * j), V(E + 2 * j + 1)])
    e.vstore("buffer_store_dwordx4", V(TT, 4), vOUT, sOUT, "0")
    e.vstore("buffer_store_dwordx4", V(TT + 4, 4), vOUT, sOUT, "0", off=16)

e.valu(f"v_add_u32 {vSA}, 0x10000, {vSA}", vSA, vSA)
out_epilogue(False)
e.valu(f"v_add_u32 {vOUT}, 0x10000, {vOUT}", vOUT, vOUT)
barrier_with(list(range(8, 16)), "B4")
for f in range(32):
    ring.reads.append(lambda dst, f=f: e.ds_read("ds_read_b128", V(dst, 4), vSA, f * 1024))
ring.avail = len(ring.reads)
run_segment([g2_mfma(f) for f in range(32)], [])
stamp('g2end')
out_epilogue(True)
if HDIAG:
    e.wait_all()
    stamp('end')
if DIAG:
    e.wait_all()
    stamp('end')
    e.raw(f"s_memrealtime {sST[0]}", kind="smem")
    e.raw("s_waitcnt lgkmcnt(0)", kind="wait")
    e.valu("v_mov_b32 v110, s88", "v110", [])
    e.vstore("buffer_store_dword", "v110", vFL, sWS, sDG, off=8)
e.label("L_end")

header = open(os.path.join(os.path.dirname(__file__), "header.txt")).read()
src = header + f"""; @launch grid=(256,1,1) block=(512,1,1) lds={LDS_BYTES}
.amdgcn_target "amdgcn-amd-amdhsa--gfx950"
.text
.globl {NAME}_kernel
.p2align 8
.type {NAME}_kernel,@function
{NAME}_kernel:
{e.text()}    s_endpgm
.section .rodata,"a"
.p2align 6
.amdhsa_kernel {NAME}_kernel
  .amdhsa_next_free_vgpr 256
  .amdhsa_next_free_sgpr 102
  .amdhsa_accum_offset 128
  .amdhsa_group_segment_fixed_size 0
  .amdhsa_kernarg_size 56
  .amdhsa_user_sgpr_count 2
  .amdhsa_user_sgpr_kernarg_segment_ptr 1
  .amdhsa_system_sgpr_workgroup_id_x 1
.end_amdhsa_kernel
"""
out = OUTP[0] if OUTP else f"cdna_kernels/{NAME}.s"
if DIAG:
    src += "; STAMPS " + " ".join(STAMPS) + "\n"
open(out, "w").write(src)
print("wrote", out, "instr counts", e.count, file=sys.stderr)
```

```python
import re

def regs(spec):
    if spec is None:
        return []
    if isinstance(spec, (list, tuple)):
        out = []
        for s in spec:
            out += regs(s)
        return out
    m = re.fullmatch(r"([vas])\[(\d+):(\d+)\]", spec)
    if m:
        return [f"{m.group(1)}{i}" for i in range(int(m.group(2)), int(m.group(3)) + 1)]
    if re.fullmatch(r"[vas]\d+", spec) or spec in ("vcc", "m0", "exec", "scc"):
        return [spec]
    return []

def R(kind, lo, n=1):
    return f"{kind}{lo}" if n == 1 else f"{kind}[{lo}:{lo+n-1}]"

class Em:
    def __init__(self):
        self.lines = []
        self.hist = []
        self.ds_issued = 0
        self.ds_done = 0
        self.vm_ops = []
        self.vm_done = {"A": 0, "B": 0}
        self.role = None
        self.pend_ds = {}
        self.pend_vm = {}
        self.nlabel = 0
        self.count = {}

    def raw(self, text, states=1, kind="other", w=(), r=(), passes=0, srcc=()):
        self.lines.append("    " + text)
        self.hist.append(dict(kind=kind, w=set(w), r=set(r), passes=passes, states=states, srcc=set(srcc)))
        if self.role is not None:
            self._blk.append(self.hist[-1])
        if len(self.hist) > 80:
            self.hist.pop(0)
        self.count[kind] = self.count.get(kind, 0) + 1

    def comment(self, text):
        self.lines.append("    ; " + text)

    def label(self, name):
        self.lines.append(name + ":")

    def newlabel(self, base="L"):
        self.nlabel += 1
        return f"{base}_{self.nlabel}"

    def nop(self, n):
        while n > 0:
            k = min(n, 16)
            self.raw(f"s_nop {k-1}", states=k, kind="nop")
            n -= k

    def wait_ds(self, idx):
        if idx < self.ds_done:
            return
        n = self.ds_issued - idx - 1
        n = min(n, 15)
        self.raw(f"s_waitcnt lgkmcnt({n})", kind="wait")
        self.ds_done = max(self.ds_done, self.ds_issued - n)

    @property
    def vm_issued(self):
        return len(self.vm_ops)

    def _vm_add(self):
        self.vm_ops.append({"A", "B"} if self.role is None else {self.role})
        return len(self.vm_ops) - 1

    def _vm_n(self, idx, role):
        return min(63, sum(1 for o in self.vm_ops[idx + 1:] if role in o))

    def _vm_mark(self, role, n):
        k = len(self.vm_ops); c = 0
        while k > 0 and c < n:
            k -= 1
            if role in self.vm_ops[k]:
                c += 1
        self.vm_done[role] = max(self.vm_done[role], k if c == n else 0) if n > 0 else len(self.vm_ops)

    def wait_vm(self, idx):
        if idx < 0:
            return
        roles = [r for r in ("A", "B") if r in self.vm_ops[idx] and (self.role is None or self.role == r) and idx >= self.vm_done[r]]
        if not roles:
            return
        ns = {r: self._vm_n(idx, r) for r in roles}
        nmax = max(ns.values())
        if self.role is None and len(roles) == 1:
            r = roles[0]
            lb = self.newlabel("L_w")
            self.raw(f"s_cbranch_vcc{'nz' if r == 'A' else 'z'} {lb}", kind="branch")
            self.raw(f"s_waitcnt vmcnt({ns[r]})", kind="wait")
            self.label(lb)
            self._vm_mark(r, ns[r])
            return
        self.raw(f"s_waitcnt vmcnt({nmax})", kind="wait")
        for r in ("A", "B"):
            if self.role is None or self.role == r:
                self._vm_mark(r, nmax)
        for r in roles:
            if ns[r] < nmax:
                lb = self.newlabel("L_w")
                self.raw(f"s_cbranch_vcc{'nz' if r == 'A' else 'z'} {lb}", kind="branch")
                self.raw(f"s_waitcnt vmcnt({ns[r]})", kind="wait")
                self.label(lb)
                self._vm_mark(r, ns[r])

    def begin_role(self, r):
        assert self.role is None
        self._rl = self.newlabel("L_r")
        self.raw(f"s_cbranch_vcc{'nz' if r == 'A' else 'z'} {self._rl}", kind="branch")
        self.role = r
        self._ds_at = (self.ds_issued, self.ds_done)
        self._blk = []
        self._pend_at = dict(self.pend_ds)

    def end_role(self):
        if self._ds_at[0] != self.ds_issued:
            self.raw("s_waitcnt lgkmcnt(0)", kind="wait")
            for x in [x for x, i in self.pend_ds.items() if i >= self._ds_at[0]]:
                del self.pend_ds[x]
            self.ds_issued = self._ds_at[0]
        self.ds_done = self._ds_at[1]
        self.pend_ds.update(self._pend_at)
        for h in self._blk:
            h["states"] = 0
        self.label(self._rl)
        self.role = None

    def wait_all(self, vm=True, ds=True):
        parts = []
        if vm:
            parts.append("vmcnt(0)")
            for r in ("A", "B"):
                if self.role is None or self.role == r:
                    self.vm_done[r] = len(self.vm_ops)
        if ds:
            parts.append("lgkmcnt(0)"); self.ds_done = self.ds_issued
        self.raw("s_waitcnt " + " ".join(parts), kind="wait")

    def _async(self, w, r):
        need_ds = -1; need_vm = -1
        for x in list(w) + list(r):
            if x in self.pend_ds:
                need_ds = max(need_ds, self.pend_ds[x])
            if x in self.pend_vm:
                need_vm = max(need_vm, self.pend_vm[x])
        if need_ds >= 0:
            self.wait_ds(need_ds)
        if need_vm >= 0:
            self.wait_vm(need_vm)
        for x in list(w) + list(r):
            self.pend_ds.pop(x, None); self.pend_vm.pop(x, None)

    def _hazard(self, kind, w, r, passes=0, srcc=(), ab=()):
        w = set(w); r = set(r); srcc = set(srcc); ab = set(ab)
        need = 0
        dist = 0
        for h in reversed(self.hist):
            req = 0
            hk = h["kind"]
            if hk in ("valu", "trans", "perm"):
                vw = {x for x in h["w"] if x[0] in "va" and x != "vcc"}
                sw = {x for x in h["w"] if x[0] == "s" or x == "vcc"}
                if kind == "mfma" and vw & r:
                    req = max(req, 2)
                if hk == "trans" and kind in ("valu", "perm") and vw & r:
                    req = max(req, 1)
                if hk == "trans" and kind in ("mfma", "ds", "vmem") and vw & r:
                    req = max(req, 2)
                if kind == "perm" and vw & (r | w):
                    req = max(req, 2)
                if kind == "rfl" and vw & r:
                    req = max(req, 1)
                if kind in ("valu", "trans", "perm") and sw & r:
                    req = max(req, 2)
                if kind == "vmem" and sw & r:
                    req = max(req, 5)
                if kind == "salu" and sw & r:
                    req = max(req, 1)
            if hk == "rfl":
                sw = h["w"]
                if kind in ("valu", "trans", "perm") and sw & r:
                    req = max(req, 2)
                if kind == "vmem" and sw & r:
                    req = max(req, 5)
                if kind == "salu" and sw & r:
                    req = max(req, 1)
            if hk == "mfma":
                p = h["passes"]
                full = {2: 5, 4: 8, 8: 12, 16: 20}[p]
                ovl = {2: 4, 4: 6, 8: 10, 16: 18}[p]
                same = {2: 2, 4: 0, 8: 0, 16: 0}[p]
                war = {2: 1, 4: 3, 8: 7, 16: 15}[p]
                if kind == "mfma":
                    if h["w"] & ab:
                        req = max(req, full)
                    if h["w"] & srcc:
                        if h["w"] == srcc and p == passes:
                            req = max(req, same)
                        else:
                            req = max(req, ovl)
                    if h["w"] & w and not (h["w"] == srcc and h["w"] == w):
                        if not (h["w"] == w and p == passes):
                            req = max(req, ovl)
                elif kind in ("valu", "trans", "perm", "ds", "vmem", "rfl"):
                    if h["w"] & (r | w):
                        req = max(req, full)
                    if kind in ("valu", "trans", "perm") and h["srcc"] & w:
                        req = max(req, war)
            if hk == "vmem" and h.get("wide_store"):
                if h["wide_store"] & w:
                    req = max(req, 2)
            if hk == "salu" and "m0" in h["w"] and kind == "vmem" and "m0" in r:
                req = max(req, 1)
            if req > dist:
                need = max(need, req - dist)
            dist += h["states"]
            if dist > 24:
                break
        if need:
            self.nop(need)

    def valu(self, text, w, r, kind="valu"):
        w = regs(w); r = regs(r)
        self._async(w, r)
        self._hazard(kind, w, r)
        self.raw(text, kind=kind, w=w, r=r)

    def trans(self, text, w, r):
        self.valu(text, w, r, kind="trans")

    def perm(self, a, b):
        self.valu(f"v_permlane16_swap_b32 {a}, {b}", [a, b], [a, b], kind="perm")

    def rfl(self, s, v):
        w = regs(s); r = regs(v)
        self._async(w, r)
        self._hazard("rfl", w, r)
        self.raw(f"v_readfirstlane_b32 {s}, {v}", kind="rfl", w=w, r=r)

    def salu(self, text, w=(), r=()):
        w = regs(w); r = regs(r)
        self._hazard("salu", w, r)
        self.raw(text, kind="salu", w=w, r=r)

    def mfma(self, op, d, a, b, c, passes):
        w = regs(d); ab = regs(a) + regs(b); cc = regs(c)
        self._async(w, ab + cc)
        self._hazard("mfma", w, ab + cc, passes=passes, srcc=cc, ab=ab)
        self.raw(f"{op} {d}, {a}, {b}, {c}", kind="mfma", w=w, r=ab + cc, passes=passes, srcc=cc)

    def m32(self, d, a, b, c):
        self.mfma("v_mfma_f32_32x32x16_bf16", d, a, b, c, 8)

    def m4(self, d, a, b, c):
        self.mfma("v_mfma_f32_4x4x4_16b_bf16", d, a, b, c, 2)

    def ds_read(self, op, d, addr, off):
        assert 0 <= off < 65536, off
        w = regs(d); r = regs(addr)
        self._async(w, r)
        self._hazard("ds", w, r)
        self.raw(f"{op} {d}, {addr} offset:{off}", kind="ds", w=w, r=r)
        for x in w:
            self.pend_ds[x] = self.ds_issued
        self.ds_issued += 1
        return self.ds_issued - 1

    def ds_write(self, op, addr, s, off):
        assert 0 <= off < 65536, off
        r = regs(addr) + regs(s)
        self._async([], r)
        self._hazard("ds", [], r)
        self.raw(f"{op} {addr}, {s} offset:{off}", kind="ds", r=r)
        self.ds_issued += 1
        return self.ds_issued - 1

    def vload(self, op, d, voff, srd, soff, off=0, flags="", keep=False):
        w = regs(d); r = regs(voff) + regs(srd) + regs(soff)
        if keep:
            self._async([], r)
        else:
            self._async(w, r)
        self._hazard("vmem", w, r)
        o = f" offset:{off}" if off else ""
        self.raw(f"{op} {d}, {voff}, {srd}, {soff} offen{o}{flags}", kind="vmem", w=w, r=r)
        idx = self._vm_add()
        for x in w:
            self.pend_vm[x] = idx
        return idx

    def vstore(self, op, s, voff, srd, soff, off=0, flags=""):
        r = regs(s) + regs(voff) + regs(srd) + regs(soff)
        self._async([], r)
        self._hazard("vmem", [], r)
        o = f" offset:{off}" if off else ""
        self.raw(f"{op} {s}, {voff}, {srd}, {soff} offen{o}{flags}", kind="vmem", r=r)
        if "x4" in op or "x3" in op:
            self.hist[-1]["wide_store"] = set(regs(s))
        return self._vm_add()

    def dma(self, voff, srd, soff, off=0, flags=""):
        r = regs(voff) + regs(srd) + regs(soff) + ["m0"]
        self._async([], r)
        self._hazard("vmem", [], r)
        o = f" offset:{off}" if off else ""
        self.raw(f"buffer_load_dwordx4 {voff}, {srd}, {soff} offen{o}{flags} lds", kind="vmem", r=r)
        return self._vm_add()

    def barrier(self):
        self.raw("s_barrier", kind="barrier")

    def text(self):
        return "\n".join(self.lines) + "\n"
```

```python
import sys, os
sys.path.insert(0, os.path.dirname(__file__))
from em import Em, R

NAME = "standalone__conformer_conv_module__speech"
DIAG = "--diag" in sys.argv
HDIAG = "--hdiag" in sys.argv
HNAMES = ["c0", "k0", "a2", "a4", "a6", "o2", "B2", "B4", "end"]
XP = set(a[4:] for a in sys.argv if a.startswith("--x-"))
OUTP = [a for a in sys.argv[1:] if not a.startswith("--")]

PAGE = 8192
HBASE = 17 * PAGE
HS = 160
HW = 16 * HS
DUMMY = HBASE + 8 * HW
LDS_BYTES = 163840
ST0 = [(4, 6), (8, 7), (10, 12), (14, 13), (0, 2), (16, 3), (18, 6), (4, 7)]
WS_S = 0
WS_HALO = 8 << 20
WS_SFLAG = 9 << 20
WS_HFLAG = 10 << 20
WS_DIAG = 11 << 20
WS_BYTES = 16 << 20
OOB = 0x80000000
SPIN_LIMIT = 64 if XP - {'light', 'mini', 'allb'} else 1 << 18

sX, sW1, sW2, sWS, sOUT, sDW, sDBG = "s[20:23]", "s[24:27]", "s[28:31]", "s[32:35]", "s[36:39]", "s[40:43]", "s[44:47]"
sW, sCG, sP, sM, sG, sMM, sB, sC0 = "s48", "s49", "s50", "s51", "s52", "s53", "s54", "s55"
sKC = [f"s{56+j}" for j in range(8)]
sW1024, sW2048, sT0, sT1, sT2, sT3 = "s64", "s65", "s66", "s67", "s68", "s69"
sRT = "s[70:71]"
sSB = "s72"
sFB = "s73"
sHD = "s74"
sHF = "s75"
sND = "s76"
sNF = "s77"
sLB = "s78"
sPB = "s79"
sNEEDH = "s80"
sCNT = "s81"
sW4096 = "s82"
sCMP = "s[84:85]"
sDG = "s86"
sGP = "s87"
sLB2 = "s19"
sCM2 = "s[100:101]"
sST = [f"s[{88+2*i}:{89+2*i}]" for i in range(6)]
vL = "v1"
vXA = [f"v{2+i}" for i in range(4)]
vXB = [f"v{6+i}" for i in range(4)]
vDX, vDX0, vDW1, vDW2 = "v10", "v11", "v12", "v13"
vHW, vHP1, vHP2 = "v14", "v15", "v120"
ACC, E = 16, 32
AF = [48 + 4 * i for i in range(6)]
CW = 72
vFL, vPF = "v82", "v83"
CI = 84
CO = 96
TT = 104
UU = 112
SF = 116
vHR, vHR1, vHR2, vSR, vSO, vSA, vOUT = "v121", "v122", "v123", "v124", "v125", "v126", "v127"
vWT = ["v84", "v85", "v86"]
vWU = ["v10", "v11"]
vEP = "v[12:13]"
EPR = 0
LOG2E_NEG = "s83"
vDD, vDR = "v116", "v117"

e = Em()

def V(i, n=1): return R("v", i, n)
def A(i, n=1): return R("a", i, n)

EP0, EP1 = "v68", "v69"
POL0, POL1 = "v70", "v71"
POL0i = 70
AF = AF[:5]

STAMPS = []
def hstamp(name):
    i = HNAMES.index(name)
    e.wait_all(vm=False, ds=True)
    e.raw(f"s_memrealtime {sST[0]}", kind="smem")
    e.raw("s_waitcnt lgkmcnt(0)", kind="wait")
    e.salu(f"s_mov_b32 s{93+i}, s88", f"s{93+i}")
    if name == "end":
        e.salu(f"s_lshl_b32 s92, {sW}, 9", "s92", sW)
        e.valu("v_not_b32 v110, s91", "v110", [])
        e.vstore("buffer_atomic_umax", "v110", vFL, sDBG, "s92", off=8)
        e.valu("v_mov_b32 v111, s88", "v111", [])
        e.vstore("buffer_atomic_umax", "v111", vFL, sDBG, "s92", off=12)
        e.salu("s_cmp_eq_u32 s2, 100", "scc")
        e.salu("s_cselect_b32 s92, s92, 512", "s92", "s92")
        e.valu("v_mov_b32 v109, s91", "v109", [])
        e.vstore("buffer_store_dword", "v109", vFL, sDBG, "s92", off=16)
        for j in range(len(HNAMES)):
            e.valu(f"v_mov_b32 v{96+j}, s{93+j}", f"v{96+j}", [])
            e.vstore("buffer_store_dword", f"v{96+j}", vFL, sDBG, "s92", off=20 + 4 * j)
MST = []
def mstamp(name):
    if not DIAG or "mini" not in XP:
        return
    assert len(MST) < 4
    r = 92 + 2 * len(MST)
    e.raw(f"s_memtime s[{r}:{r+1}]", kind="smem")
    MST.append((name, r))
def stamp(name):
    if HDIAG and name in HNAMES:
        hstamp(name)
    if not DIAG:
        return
    if MST:
        e.wait_all(vm=False, ds=True)
        for nm, r in MST:
            STAMPS.append(nm); i = 2 + len(STAMPS)
            e.valu(f"v_mov_b32 v110, s{r}", "v110", [])
            e.vstore("buffer_store_dword", "v110", vFL, sWS, sDG, off=4 * i)
        MST.clear()
    STAMPS.append(str(name)); i = 2 + len(STAMPS)
    e.wait_all(vm=False, ds=True)
    e.raw(f"s_memtime {sST[0]}", kind="smem")
    e.raw("s_waitcnt lgkmcnt(0)", kind="wait")
    e.valu(f"v_mov_b32 v110, {sST[0].replace('[88:89]','88')}", "v110", [])
    e.vstore("buffer_store_dword", "v110", vFL, sWS, sDG, off=4 * i)

e.salu("s_cmp_ge_u32 s2, 256")
e.raw("s_cbranch_scc1 L_end", kind="branch")
e.raw("s_load_dwordx8 s[4:11], s[0:1], 0", kind="smem")
e.raw("s_load_dwordx4 s[12:15], s[0:1], 32", kind="smem")
e.raw("s_load_dwordx2 s[16:17], s[0:1], 48", kind="smem")
e.raw(f"s_memrealtime {sRT}", kind="smem")
if DIAG:
    e.raw(f"s_memtime {sST[1]}", kind="smem")
e.valu("v_lshrrev_b32 v104, 6, v0", "v104", "v0")
e.valu(f"v_and_b32 {vL}, 63, v0", vL, "v0")
e.rfl(sW, "v104")
e.salu(f"s_and_b32 {sT0}, s2, 7", sT0)
e.salu(f"s_lshr_b32 {sT1}, s2, 3", sT1)
e.salu(f"s_and_b32 {sG}, {sT1}, 7", sG, sT1)
e.salu(f"s_lshr_b32 {sT1}, {sT1}, 3", sT1, sT1)
e.salu(f"s_lshl_b32 {sM}, {sT0}, 2", sM, sT0)
e.salu(f"s_add_u32 {sM}, {sM}, {sT1}", sM, [sM, sT1])
e.salu(f"s_and_b32 {sMM}, {sM}, 15", sMM, sM)
e.salu(f"s_lshr_b32 {sB}, {sM}, 4", sB, sM)
e.salu(f"s_lshl_b32 {sT1}, {sT1}, 1", sT1, sT1)
e.salu(f"s_add_u32 {sC0}, {sG}, {sT1}", sC0, [sG, sT1])
e.salu(f"s_and_b32 {sCG}, {sW}, 3", sCG, sW)
e.salu(f"s_lshr_b32 {sP}, {sW}, 2", sP, sW)
e.salu(f"s_lshl_b32 {sW1024}, {sW}, 10", sW1024, sW)
e.salu(f"s_lshl_b32 {sW2048}, {sW}, 11", sW2048, sW)
for j in range(8):
    e.salu(f"s_add_u32 {sKC[j]}, {sC0}, {j}", sKC[j], sC0)
    e.salu(f"s_and_b32 {sKC[j]}, {sKC[j]}, 7", sKC[j], sKC[j])
    e.salu(f"s_lshl_b32 {sKC[j]}, {sKC[j]}, 7", sKC[j], sKC[j])
e.valu(f"v_lshrrev_b32 v104, 4, {vL}", "v104", vL)
e.valu(f"v_and_b32 v105, 7, {vL}", "v105", vL)
e.valu("v_lshlrev_b32 v106, 1, v104", "v106", "v104")
e.valu("v_xor_b32 v106, v106, v105", "v106", ["v106", "v105"])
e.valu("v_lshlrev_b32 v106, 4, v106", "v106", "v106")
e.valu(f"v_bfe_u32 v107, {vL}, 3, 1", "v107", vL)
e.valu("v_lshl_add_u32 v106, v107, 10, v106", "v106", ["v107", "v106"])
e.valu("v_lshl_add_u32 v106, v104, 11, v106", "v106", ["v104", "v106"])
e.salu(f"s_lshl_b32 {sT0}, {sW}, 14", sT0, sW)
e.salu(f"s_lshl_b32 {sT1}, {sG}, 7", sT1, sG)
e.salu(f"s_add_u32 {sT0}, {sT0}, {sT1}", sT0, [sT0, sT1])
e.valu(f"v_add_u32 {vDW1}, {sT0}, v106", vDW1, [sT0, "v106"])
e.valu(f"v_lshrrev_b32 v104, 3, {vL}", "v104", vL)
e.salu(f"s_lshl_b32 {sT0}, {sCG}, 3", sT0, sCG)
e.valu(f"v_add_u32 v104, {sT0}, v104", "v104", [sT0, "v104"])
e.valu("v_bfe_u32 v106, v104, 1, 3", "v106", "v104")
e.valu("v_xor_b32 v106, v106, v105", "v106", ["v106", "v105"])
e.salu(f"s_lshl_b32 {sT0}, {sMM}, 8", sT0, sMM)
e.salu(f"s_lshl_b32 {sT1}, {sP}, 7", sT1, sP)
e.salu(f"s_add_u32 {sT0}, {sT0}, {sT1}", sT0, [sT0, sT1])
e.salu(f"s_sub_u32 {sT0}, {sT0}, 7", sT0, sT0)
e.valu(f"v_add_u32 v104, {sT0}, v104", "v104", [sT0, "v104"])
e.valu("v_lshlrev_b32 v107, 10, v104", "v107", "v104")
e.valu("v_lshl_add_u32 v107, v106, 4, v107", "v107", ["v106", "v107"])
e.valu("v_cmp_gt_i32 vcc, 0, v104", "vcc", "v104")
e.valu(f"v_mov_b32 v106, {hex(OOB)}", "v106", [])
e.valu(f"v_cndmask_b32 {vDX0}, v107, v106, vcc", vDX0, ["v107", "v106", "vcc"])
e.valu(f"v_add_u32 {vDX}, 0x8000, v107", vDX, "v107")
e.raw("s_waitcnt lgkmcnt(0)", kind="wait")
e.salu(f"s_mul_i32 {sT0}, {sB}, 4096000", sT0, sB)
e.salu("s_mov_b32 s24, s6", "s24"); e.salu("s_mov_b32 s25, s7", "s25")
e.salu("s_mov_b32 s26, 1048576", "s26"); e.salu("s_mov_b32 s27, 0x00020000", "s27")
e.salu(f"s_add_u32 s20, s4, {sT0}", "s20", sT0); e.salu("s_addc_u32 s21, s5, 0", "s21")
e.salu("s_mov_b32 s22, 4096000", "s22"); e.salu("s_mov_b32 s23, 0x00020000", "s23")

page_dma = {}

def dma_x(page, j, voff):
    e.salu(f"s_add_u32 m0, {sW1024}, {page*PAGE}", "m0", sW1024)
    page_dma[page] = e.dma(voff, sX, sKC[j])

def dma_w(page, j, which, part=None):
    sh, srd, voff, row4 = (10, sW1, vDW1, 8192) if which == 1 else (9, sW2, vDW2, 4096)
    e.salu(f"s_add_u32 m0, {sW2048}, {page*PAGE}", "m0", sW2048)
    e.salu(f"s_lshl_b32 {sT3}, {sKC[j]}, {sh}", sT3, sKC[j])
    if part in (None, 0):
        e.dma(voff, srd, sT3)
    if part in (None, 1):
        e.salu(f"s_add_u32 {sT3}, {sT3}, {row4-1024}", sT3, sT3)
        idx = e.dma(voff, srd, sT3, off=1024)
        page_dma[page] = idx; page_dma[page + 1] = idx

def dma_chunk(j):
    dma_w(ST0[j][0], j, 1)
    dma_x(ST0[j][1], j, vDX0)
dma_chunk(0)

e.salu("s_mov_b32 s28, s10", "s28"); e.salu("s_mov_b32 s29, s11", "s29")
e.salu("s_mov_b32 s30, 524288", "s30"); e.salu("s_mov_b32 s31, 0x00020000", "s31")
e.salu("s_mov_b32 s32, s16", "s32"); e.salu("s_mov_b32 s33, s17", "s33")
e.salu(f"s_mov_b32 s34, {WS_BYTES}", "s34"); e.salu("s_mov_b32 s35, 0x00020000", "s35")
e.salu(f"s_add_u32 s36, s12, {sT0}", "s36", sT0); e.salu("s_addc_u32 s37, s13, 0", "s37")
e.salu("s_mov_b32 s38, 4096000", "s38"); e.salu("s_mov_b32 s39, 0x00020000", "s39")
e.salu("s_mov_b32 s40, s8", "s40"); e.salu("s_mov_b32 s41, s9", "s41")
e.salu("s_mov_b32 s42, 15360", "s42"); e.salu("s_mov_b32 s43, 0x00020000", "s43")
e.salu("s_mov_b32 s44, s14", "s44"); e.salu("s_mov_b32 s45, s15", "s45")
e.salu("s_mov_b32 s46, 256", "s46"); e.salu("s_mov_b32 s47, 0x00020000", "s47")
e.valu(f"v_mov_b32 v106, {hex(OOB)}", "v106", [])
e.valu(f"v_cmp_eq_u32 vcc, 0, {vL}", "vcc", vL)
e.valu(f"v_cndmask_b32 {vFL}, v106, {vL}, vcc", vFL, ["v106", vL, "vcc"])
e.salu("s_mov_b32 s91, s70", "s91", "s70")
e.salu("s_or_b32 s70, s70, 1", "s70", "s70")
e.salu("s_lshl_b32 s71, s2, 10", "s71")
e.valu("v_add_u32 v104, s71, v0", "v104", ["s71", "v0"])
e.valu("v_cmp_eq_u32 vcc, 0, v104", "vcc", "v104")
e.valu("v_cndmask_b32 v104, v106, v104, vcc", "v104", ["v106", "v104", "vcc"])
e.valu("v_mov_b32 v105, s70", "v105", "s70")
e.vstore("buffer_store_dword", "v105", "v104", sDBG, "0", flags=" sc1")
e.valu(f"v_lshrrev_b32 v104, 2, {vL}", "v104", vL)
e.valu(f"v_and_b32 v105, 3, {vL}", "v105", vL)
e.salu(f"s_lshl_b32 {sT0}, {sG}, 7", sT0, sG)
e.salu(f"s_lshl_b32 {sT1}, {sCG}, 5", sT1, sCG)
e.salu(f"s_add_u32 {sT0}, {sT0}, {sT1}", sT0, [sT0, sT1])
e.salu(f"s_sub_u32 {sT0}, {sT0}, 3072", sT0, sT0)
e.valu(f"v_lshrrev_b32 v106, 1, {vL}", "v106", vL)
e.valu(f"v_lshl_add_u32 v106, v106, 10, {sT0}", "v106", ["v106", sT0])
e.valu(f"v_and_b32 v107, 1, {vL}", "v107", vL)
e.valu(f"v_lshl_add_u32 {vDD}, v107, 4, v106", vDD, ["v107", "v106"])
e.salu(f"s_add_u32 {sT1}, {sW1024}, {16*PAGE + 96}", sT1, sW1024)
e.valu(f"v_lshl_add_u32 v106, v104, 1, {sT1}", "v106", ["v104", sT1])
e.valu("v_lshlrev_b32 v107, 5, v105", "v107", "v105")
e.valu(f"v_sub_u32 {vDR}, v106, v107", vDR, ["v106", "v107"])
e.salu(f"s_mov_b32 {LOG2E_NEG}, 0xbfb8aa3b", LOG2E_NEG)
dma_chunk(1)
e.salu(f"s_mul_i32 {sT0}, {sW}, {HW}", sT0, sW)
e.salu(f"s_add_u32 {sT0}, {sT0}, {HBASE}", sT0, sT0)
e.valu(f"v_mul_u32_u24 v106, {HS}, v104", "v106", "v104")
e.valu("v_lshl_add_u32 v106, v105, 4, v106", "v106", ["v105", "v106"])
e.valu(f"v_add_u32 {vHR}, {sT0}, v106", vHR, [sT0, "v106"])
e.valu(f"v_subrev_u32 v107, 128, {vHR}", "v107", vHR)
e.valu("v_cmp_eq_u32 vcc, 3, v105", "vcc", "v105")
e.valu(f"v_cndmask_b32 {vHR1}, {vHR}, v107, vcc", vHR1, [vHR, "v107", "vcc"])
e.valu("v_cmp_lt_u32 vcc, 1, v105", "vcc", "v105")
e.valu(f"v_cndmask_b32 {vHR2}, {vHR}, v107, vcc", vHR2, [vHR, "v107", "vcc"])
e.valu(f"v_and_b32 v106, 15, {vL}", "v106", vL)
e.valu(f"v_mul_u32_u24 v106, {HS}, v106", "v106", "v106")
e.valu(f"v_bfe_u32 v107, {vL}, 4, 1", "v107", vL)
e.valu("v_lshl_add_u32 v106, v107, 4, v106", "v106", ["v107", "v106"])
e.valu(f"v_lshrrev_b32 v108, 5, {vL}", "v108", vL)
e.valu("v_lshl_add_u32 v106, v108, 3, v106", "v106", ["v108", "v106"])
e.valu(f"v_add_u32 {vHW}, {sT0}, v106", vHW, [sT0, "v106"])
e.salu(f"s_cmp_eq_u32 {sP}, 0", "scc", sP)
e.salu(f"s_sub_u32 {sT1}, {sT0}, {4*HW - 128}", sT1, sT0)
e.salu(f"s_cmp_eq_u32 {sP}, 0", "scc", sP)
e.salu(f"s_cselect_b32 {sT1}, {DUMMY}, {sT1}", sT1, [sT1, "scc"])
e.valu(f"v_add_u32 {vHP1}, {sT1}, v106", vHP1, [sT1, "v106"])
e.salu(f"s_add_u32 {sT1}, {sT0}, 128", sT1, sT0)
e.salu(f"s_cmp_eq_u32 {sP}, 0", "scc", sP)
e.salu(f"s_cselect_b32 {sT1}, {DUMMY}, {sT1}", sT1, [sT1, "scc"])
e.valu(f"v_add_u32 {vHP2}, {sT1}, v106", vHP2, [sT1, "v106"])
e.valu(f"v_bfe_u32 v109, {vL}, 2, 2", "v109", vL)
e.valu("v_lshl_add_u32 v106, v108, 3, v109", "v106", ["v108", "v109"])
e.valu(f"v_mul_u32_u24 v106, {HS}, v106", "v106", "v106")
e.valu("v_lshl_add_u32 v106, v107, 5, v106", "v106", ["v107", "v106"])
e.valu("v_lshl_add_u32 v106, v105, 3, v106", "v106", ["v105", "v106"])
e.valu(f"v_add_u32 {vSR}, {sT0}, v106", vSR, [sT0, "v106"])
e.valu("v_lshl_add_u32 v106, v108, 3, v109", "v106", ["v108", "v109"])
e.valu("v_lshlrev_b32 v106, 8, v106", "v106", "v106")
e.valu("v_lshrrev_b32 v110, 1, v105", "v110", "v105")
e.salu(f"s_lshl_b32 {sT1}, {sCG}, 1", sT1, sCG)
e.valu(f"v_add_u32 v110, {sT1}, v110", "v110", [sT1, "v110"])
e.valu("v_lshlrev_b32 v111, 1, v109", "v111", "v109")
e.valu("v_xor_b32 v110, v110, v111", "v110", ["v110", "v111"])
e.valu("v_lshl_add_u32 v110, v110, 4, v106", "v110", ["v110", "v106"])
e.valu("v_lshl_add_u32 v110, v107, 7, v110", "v110", ["v107", "v110"])
e.valu("v_and_b32 v111, 1, v105", "v111", "v105")
e.valu(f"v_lshl_add_u32 {vWT[0]}, v111, 3, v110", vWT[0], ["v111", "v110"])
e.valu(f"v_add_u32 {vWT[1]}, 0x10000, {vWT[0]}", vWT[1], vWT[0])
e.valu(f"v_add_u32 {vWT[2]}, 0x20000, {vWT[0]}", vWT[2], vWT[0])
e.valu(f"v_xor_b32 v110, {sCG}, v109", "v110", [sCG, "v109"])
e.valu("v_lshl_add_u32 v110, v110, 6, v106", "v110", ["v110", "v106"])
e.valu("v_lshl_add_u32 v110, v111, 5, v110", "v110", ["v111", "v110"])
e.valu("v_lshl_add_u32 v110, v107, 4, v110", "v110", ["v107", "v110"])
e.valu("v_lshrrev_b32 v111, 1, v105", "v111", "v105")
e.valu("v_lshl_add_u32 v0, v111, 3, v110", "v0", ["v111", "v110"])
vWU = ["v0", "v11"]
dma_chunk(2)
e.valu(f"v_and_b32 v106, 31, {vL}", "v106", vL)
e.valu("v_bfe_u32 v110, v106, 1, 3", "v110", "v106")
e.valu("v_xor_b32 v110, v110, v108", "v110", ["v110", "v108"])
e.salu(f"s_lshl_b32 {sT1}, {sP}, 12", sT1, sP)
e.valu(f"v_lshl_add_u32 v106, v106, 7, {sT1}", "v106", ["v106", sT1])
for s_ in range(4):
    e.valu(f"v_xor_b32 v111, {2*s_}, v110", "v111", "v110")
    e.valu(f"v_lshl_add_u32 {vXA[s_]}, v111, 4, v106", vXA[s_], ["v111", "v106"])
    e.valu(f"v_add_u32 {vXB[s_]}, 0x10000, {vXA[s_]}", vXB[s_], vXA[s_])
dma_chunk(3)
e.valu(f"v_lshrrev_b32 v106, 4, {vL}", "v106", vL)
e.valu("v_xor_b32 v110, v109, v106", "v110", ["v109", "v106"])
e.valu("v_lshl_add_u32 v110, v110, 2, v105", "v110", ["v110", "v105"])
e.valu("v_lshlrev_b32 v110, 4, v110", "v110", "v110")
e.valu("v_lshl_add_u32 v110, v106, 10, v110", "v110", ["v106", "v110"])
e.salu(f"s_lshl_b32 {sT0}, {sW}, 13", sT0, sW)
e.salu(f"s_lshr_b32 {sT1}, {sG}, 1", sT1, sG)
e.salu(f"s_lshl_b32 {sT1}, {sT1}, 8", sT1, sT1)
e.salu(f"s_add_u32 {sT0}, {sT0}, {sT1}", sT0, [sT0, sT1])
e.valu(f"v_add_u32 {vDW2}, {sT0}, v110", vDW2, [sT0, "v110"])
e.salu(f"s_lshl_b32 {sT0}, {sCG}, 6", sT0, sCG)
e.salu(f"s_add_u32 {sT1}, {sT1}, {sT0}", sT1, [sT1, sT0])
e.salu(f"s_and_b32 {sT0}, {sG}, 1", sT0, sG)
e.salu(f"s_lshl_b32 {sT2}, {sT0}, 17", sT2, sT0)
e.salu(f"s_add_u32 {sT1}, {sT1}, {sT2}", sT1, [sT1, sT2])
e.salu(f"s_lshl_b32 {sT2}, {sMM}, 18", sT2, sMM)
e.salu(f"s_add_u32 {sT1}, {sT1}, {sT2}", sT1, [sT1, sT2])
e.salu(f"s_lshl_b32 {sT2}, {sP}, 15", sT2, sP)
e.salu(f"s_add_u32 {sT1}, {sT1}, {sT2}", sT1, [sT1, sT2])
e.valu(f"v_and_b32 v106, 31, {vL}", "v106", vL)
e.valu(f"v_lshl_add_u32 v106, v106, 10, {sT1}", "v106", ["v106", sT1])
e.valu(f"v_lshl_add_u32 {vOUT}, v108, 5, v106", vOUT, ["v108", "v106"])
e.valu(f"v_lshlrev_b32 {vSO}, 4, {vL}", vSO, vL)
e.salu(f"s_mul_i32 {sT1}, {sP}, 98304", sT1, sP)
e.valu(f"v_add_u32 {vSA}, {sT1}, {vSO}", vSA, [sT1, vSO])
e.salu(f"s_add_u32 {sT1}, {sC0}, {sW}", sT1, [sC0, sW])
e.salu(f"s_and_b32 {sGP}, {sT1}, 7", sGP, sT1)
e.valu("v_lshlrev_b32 v106, 2, v104", "v106", "v104")
e.valu(f"v_xor_b32 v106, {sGP}, v106", "v106", [sGP, "v106"])
e.valu("v_lshlrev_b32 v106, 7, v106", "v106", "v106")
e.valu("v_lshl_add_u32 v106, v105, 3, v106", "v106", ["v105", "v106"])
e.valu(f"v_mov_b32 v110, {hex(OOB)}", "v110", [])
e.valu(f"v_cmp_gt_u32 vcc, 8, {vL}", "vcc", vL)
e.valu(f"v_cndmask_b32 {vPF}, v110, v106, vcc", vPF, ["v110", "v106", "vcc"])
e.salu(f"s_lshl_b32 {sT1}, {sG}, 2", sT1, sG)
e.salu(f"s_add_u32 {sT1}, {sT1}, {sCG}", sT1, [sT1, sCG])
e.salu(f"s_lshl_b32 {sT2}, {sM}, 3", sT2, sM)
e.salu(f"s_lshl_b32 {sT3}, {sP}, 2", sT3, sP)
e.salu(f"s_add_u32 {sT3}, {sT3}, {sT2}", sT3, [sT3, sT2])
e.salu(f"s_lshl_b32 {sSB}, {sT3}, 5", sSB, sT3)
e.salu(f"s_add_u32 {sSB}, {sSB}, {sT1}", sSB, [sSB, sT1])
e.salu(f"s_lshl_b32 {sSB}, {sSB}, 10", sSB, sSB)
e.salu(f"s_lshl_b32 {sFB}, {sT3}, 3", sFB, sT3)
e.salu(f"s_add_u32 {sFB}, {sFB}, {sG}", sFB, [sFB, sG])
e.salu(f"s_lshl_b32 {sFB}, {sFB}, 7", sFB, sFB)
e.salu(f"s_lshl_b32 {sT3}, {sCG}, 3", sT3, sCG)
e.salu(f"s_add_u32 {sFB}, {sFB}, {sT3}", sFB, [sFB, sT3])
e.salu(f"s_add_u32 {sFB}, {sFB}, {WS_SFLAG}", sFB, sFB)
e.salu(f"s_lshl_b32 {sT3}, {sM}, 5", sT3, sM)
e.salu(f"s_add_u32 {sT3}, {sT3}, {sT1}", sT3, [sT3, sT1])
e.salu(f"s_lshl_b32 {sHD}, {sT3}, 9", sHD, sT3)
e.salu(f"s_add_u32 {sHD}, {sHD}, {WS_HALO}", sHD, sHD)
e.salu(f"s_add_u32 {sND}, {sHD}, {32*512}", sND, sHD)
e.salu(f"s_lshl_b32 {sHF}, {sT3}, 7", sHF, sT3)
e.salu(f"s_add_u32 {sHF}, {sHF}, {WS_HFLAG}", sHF, sHF)
e.salu(f"s_add_u32 {sNF}, {sHF}, {32*128}", sNF, sHF)
e.salu(f"s_cmp_lg_u32 {sMM}, 15", "scc", sMM)
e.salu(f"s_cselect_b32 {sNEEDH}, 1, 0", sNEEDH, ["scc"])
e.salu(f"s_lshl_b32 {sT3}, {sT0}, 2", sT3, sT0)
e.salu(f"s_add_u32 {sT3}, {sT3}, {sT2}", sT3, [sT3, sT2])
e.salu(f"s_lshl_b32 {sPB}, {sT3}, 10", sPB, sT3)
e.salu(f"s_add_u32 {sPB}, {sPB}, {WS_SFLAG}", sPB, sPB)
e.salu(f"s_lshl_b32 {sT3}, {sT3}, 3", sT3, sT3)
e.salu(f"s_add_u32 {sLB}, {sT3}, {sGP}", sLB, [sT3, sGP])
e.salu(f"s_lshl_b32 {sLB}, {sLB}, 12", sLB, sLB)
e.salu(f"s_xor_b32 {sLB2}, {sLB}, 16384", sLB2, sLB)
e.salu(f"s_cmp_eq_u32 {sP}, 1", "scc", sP)
e.salu("s_cselect_b64 vcc, -1, 0", "vcc", "scc")
e.salu(f"s_lshl_b32 {sW4096}, {sW}, 12", sW4096, sW)
if DIAG:
    e.salu(f"s_lshl_b32 {sDG}, s2, 3", sDG)
    e.salu(f"s_add_u32 {sDG}, {sDG}, {sW}", sDG, [sDG, sW])
    e.salu(f"s_lshl_b32 {sDG}, {sDG}, 8", sDG, sDG)
    e.salu(f"s_add_u32 {sDG}, {sDG}, {WS_DIAG}", sDG, sDG)
    e.valu("v_mov_b32 v110, s90", "v110", [])
    e.vstore("buffer_store_dword", "v110", vFL, sWS, sDG, off=0)
    e.valu("v_mov_b32 v110, s70", "v110", [])
    e.vstore("buffer_store_dword", "v110", vFL, sWS, sDG, off=4)
stamp('pro')

def barrier_with(pages, name=None):
    idx = max([page_dma[p] for p in pages], default=-1)
    if name and "light" not in XP: stamp(name + ".pre")
    if idx >= 0:
        e.wait_vm(idx)
    if name and "light" not in XP: stamp(name + ".vm")
    e.barrier()
    if name: stamp(name)

def x_read(dst, page, s_):
    base = vXA if page < 8 else vXB
    e.ds_read("ds_read_b128", V(dst, 4), base[s_], (page % 8) * PAGE)

def w_tr(bases, f, page, s_):
    for ee in range(2):
        addr = page * PAGE + 4096 * s_ + 1024 * ee
        e.ds_read("ds_read_b64_tr_b16", A(4 * f + 2 * ee, 2), bases[addr >> 16], addr & 0xffff)

def poll_check(mask, load, maskreg=None):
    ok = e.newlabel("L_ok"); lp = e.newlabel("L_poll")
    def chk():
        e.valu(f"v_cmp_eq_u32 {sCM2}, {EP0}, {POL0}", sCM2, [EP0, POL0])
        e.valu(f"v_cmp_eq_u32 {sCMP}, {EP1}, {POL1}", sCMP, [EP1, POL1])
        e.nop(2)
        e.salu("s_and_b32 s84, s84, s100", "s84", ["s84", "s100"])
        mk = maskreg if maskreg else str(mask)
        e.salu(f"s_and_b32 s84, s84, {mk}", "s84", "s84")
        e.salu(f"s_cmp_eq_u32 s84, {mk}", "scc", "s84")
        e.raw(f"s_cbranch_scc1 {ok}", kind="branch")
    chk()
    e.salu(f"s_mov_b32 {sCNT}, 0", sCNT)
    e.label(lp)
    e.raw("s_sleep 1", kind="other")
    e.raw(load, kind="other")
    e.raw("s_waitcnt vmcnt(0)", kind="wait")
    chk()
    e.salu(f"s_add_u32 {sCNT}, {sCNT}, 1", sCNT, sCNT)
    e.salu(f"s_cmp_lt_u32 {sCNT}, {SPIN_LIMIT}", "scc", sCNT)
    e.raw(f"s_cbranch_scc1 {lp}", kind="branch")
    e.label(ok)
    e.nop(2)

def poll_issue(voff, soff):
    e.vload("buffer_load_dwordx2", f"v[{POL0[1:]}:{POL1[1:]}]", voff, sWS, soff, flags=" sc1")
    return f"buffer_load_dwordx2 v[{POL0[1:]}:{POL1[1:]}], {voff}, {sWS}, {soff} offen sc1"

def glu_fillers(r, first=False):
    F = []
    slot = r % 2
    for gp in (0, 2):
        a = [E + 4 * gp + j for j in range(4)]
        b = [E + 4 * (gp + 1) + j for j in range(4)]
        for j in range(4):
            F.append((9, lambda a=a[j], b=b[j]: e.perm(V(a), V(b))))
        for j in range(4):
            F.append((4, lambda b=b[j]: e.valu(f"v_mul_f32 {V(b)}, {LOG2E_NEG}, {V(b)}", V(b), V(b))))
        for j in range(4):
            F.append((9, lambda b=b[j]: e.trans(f"v_exp_f32 {V(b)}, {V(b)}", V(b), V(b))))
        for j in range(4):
            F.append((4, lambda b=b[j]: e.valu(f"v_add_f32 {V(b)}, 1.0, {V(b)}", V(b), V(b))))
        for j in range(4):
            F.append((9, lambda b=b[j]: e.trans(f"v_rcp_f32 {V(b)}, {V(b)}", V(b), V(b))))
        for j in range(4):
            F.append((4, lambda a=a[j], b=b[j]: e.valu(f"v_mul_f32 {V(a)}, {V(a)}, {V(b)}", V(a), [V(a), V(b)])))
        u = UU + gp
        F.append((4, lambda a=a, u=u: e.valu(f"v_cvt_pk_bf16_f32 {V(u)}, {V(a[0])}, {V(a[1])}", V(u), [V(a[0]), V(a[1])])))
        F.append((4, lambda a=a, u=u: e.valu(f"v_cvt_pk_bf16_f32 {V(u+1)}, {V(a[2])}, {V(a[3])}", V(u + 1), [V(a[2]), V(a[3])])))
        F.append((1, lambda u=u, gp=gp: e.ds_write("ds_write_b64", vHW, V(u, 2), slot * 64 + gp * 16)))
        if first == "B" and gp == 0:
            F.append((1, lambda u=u: e.ds_write("ds_write_b64", vHP1, V(u, 2), 0)))
        if first == "A" and gp == 0:
            def halo_store(u=u):
                e.valu(f"v_lshlrev_b32 v{TT}, 3, {vL}", V(TT), vL)
                st["halo_store"] = e.vstore("buffer_store_dwordx2", V(u, 2), V(TT), sWS, sHD, flags=" sc1")
            F.append((9, halo_store))
    return F

st = {}
def out_fillers(r):
    F = []
    slot = r % 2
    for u in range(3):
        if r == 1:
            base = [vHR, vHR1, vHR2][u]
        else:
            base = vHR
        F.append((1, lambda u=u, base=base: e.ds_read("ds_read_b128", V(CI + 4 * u, 4), base, slot * 64 + 16 * u)))
    F.append((-2, None))
    def conv():
        for q in range(5):
            for o in range(2):
                d = V(CO + 4 * o, 4)
                e.m4(d, V(CW + 2 * q, 2), V(CI + 2 * (o + q), 2), d if q else "0")
    F.append((90, conv))
    for j in range(8):
        F.append((4, lambda j=j: e.valu(f"v_mul_f32 {V(TT+j)}, {LOG2E_NEG}, {V(CO+j)}", V(TT + j), V(CO + j))))
    for j in range(8):
        F.append((9, lambda j=j: e.trans(f"v_exp_f32 {V(TT+j)}, {V(TT+j)}", V(TT + j), V(TT + j))))
    for j in range(8):
        F.append((4, lambda j=j: e.valu(f"v_add_f32 {V(TT+j)}, 1.0, {V(TT+j)}", V(TT + j), V(TT + j))))
    for j in range(8):
        F.append((9, lambda j=j: e.trans(f"v_rcp_f32 {V(TT+j)}, {V(TT+j)}", V(TT + j), V(TT + j))))
    for j in range(8):
        F.append((4, lambda j=j: e.valu(f"v_mul_f32 {V(TT+j)}, {V(CO+j)}, {V(TT+j)}", V(TT + j), [V(CO + j), V(TT + j)])))
    for j in range(4):
        F.append((4, lambda j=j: e.valu(f"v_cvt_pk_bf16_f32 {V(UU+j)}, {V(TT+2*j)}, {V(TT+2*j+1)}", V(UU + j), [V(TT + 2 * j), V(TT + 2 * j + 1)])))
    F.append((1, lambda: e.ds_write("ds_write_b128", vHR, V(UU, 4), slot * 64)))
    for ee in range(2):
        F.append((1, lambda ee=ee: e.ds_read("ds_read_b64_tr_b16", V(SF + 2 * ee, 2), vSR, ee * 4 * HS + slot * 64)))
    F.append((-2, None))
    def store():
        e.salu(f"s_add_u32 {sT2}, {sSB}, {r*32768}", sT2, sSB)
        st[("S", r)] = e.vstore("buffer_store_dwordx4", V(SF, 4), vSO, sWS, sT2, flags=" sc1")
    F.append((9, store))
    return F

def flag_store(idx_key, soff_reg, add):
    e.wait_vm(st[idx_key])
    if add:
        e.salu(f"s_add_u32 {sT2}, {soff_reg}, {add}", sT2, soff_reg)
        soff_reg = sT2
    e.vstore("buffer_store_dwordx2", f"v[{EP0[1:]}:{EP1[1:]}]", vFL, sWS, soff_reg, flags=" sc1")

class Ring:
    def __init__(self):
        self.reads = []
        self.avail = 0
        self.issued = 0
        self.used = 0
    def fill(self):
        while self.issued < min(self.avail, self.used + len(AF)):
            self.reads[self.issued](AF[self.issued % len(AF)])
            self.issued += 1
    def take(self):
        assert self.used < self.issued, "fragment not issued"
        r = AF[self.used % len(AF)]
        self.used += 1
        return r

ring = Ring()

def run_segment(mf, F, lead=0):
    n = len(mf)
    ngap = sum(-c for c, _ in F if c < 0)
    tot = sum(c for c, _ in F if c > 0)
    per = tot / max(1, n - ngap - 1)
    fi = 0; hold = 0; credit = lead * per
    for i in range(n):
        ring.fill()
        fr = ring.take()
        mf[i](fr)
        ring.fill()
        if n == 16 and i in (0, 5, 10, 15): mstamp(f" m{i}")
        if hold > 0:
            hold -= 1
            if hold > 0:
                continue
        credit += per
        while fi < len(F) and credit > 0:
            c, f = F[fi]; fi += 1
            if c < 0:
                hold = -c; credit = min(credit, 0); break
            f(); credit -= c
    while fi < len(F):
        if F[fi][0] >= 0: F[fi][1]()
        fi += 1

def run_fillers(F):
    for c, f in F:
        if c >= 0: f()

def g1_mfma(f):
    def m(fr):
        d = V(E, 16) if f == 31 else V(ACC, 16)
        e.m32(d, V(fr, 4), A(4 * f, 4), V(ACC, 16) if f else "0")
    return m

def g2_mfma(f):
    def m(fr):
        d = V(E, 16) if f == 31 else V(ACC, 16)
        e.m32(d, A(4 * f, 4), V(fr, 4), V(ACC, 16) if f else "0")
    return m

if "fbench" in XP:
    e.wait_all(); e.barrier()
    stamp("f0")
    for it in range(4): run_fillers(glu_fillers(1))
    e.wait_all(); e.barrier()
    stamp("glu4")
    for it in range(4): run_fillers(out_fillers(2))
    e.wait_all(); e.barrier()
    stamp("out4")
    for it in range(4): run_fillers([f for f in out_fillers(2) if f[0] in (4, 9)][:-1])
    e.wait_all(); e.barrier()
    stamp("silu4")
    for it in range(4): run_fillers([f for f in out_fillers(2) if f[0] in (90,)])
    e.wait_all(); e.barrier()
    stamp("conv4")
    e.raw("s_branch L_end")
if "seg" in XP:
    e.wait_all(); e.barrier()
    for rr in range(16, 48): e.valu(f"v_mov_b32 v{rr}, 0.5", f"v{rr}", [])
    stamp("s0")
    def mrun():
        for j in range(4):
            for s_ in range(4):
                ring.reads.append(lambda dst, p=j, s_=s_: x_read(dst, p, s_))
        ring.avail = len(ring.reads)
        run_segment([g1_mfma(1 + i) for i in range(16)], [])
    novm = lambda F: [f for f in F if f[1] is None or f[1].__name__ != "store"]
    def pair(fa, fb, nm, pa=0, pb=0):
        e.begin_role("A"); e.raw(f"s_setprio {pa}"); fa(); e.end_role()
        e.begin_role("B"); e.raw(f"s_setprio {pb}"); fb(); e.end_role()
        stamp(nm)
        e.barrier()
        stamp("-")
    glu = lambda: run_fillers(glu_fillers(1))
    out = lambda: run_fillers(novm(out_fillers(2)))
    nop = lambda: None
    pair(nop, nop, "nop|nop")
    pair(mrun, nop, "M|nop")
    pair(glu, nop, "glu|nop")
    pair(out, nop, "out|nop")
    pair(mrun, glu, "M0|glu0")
    pair(mrun, glu, "M0|glu1", 0, 1)
    pair(glu, mrun, "glu0|M0")
    pair(glu, mrun, "glu1|M0", 1, 0)
    pair(mrun, out, "M0|out1", 0, 1)
    pair(out, mrun, "out1|M0", 1, 0)
    pair(mrun, mrun, "M|M")
    pair(glu, glu, "glu|glu")
    e.raw("s_branch L_end")
XQ = {1: [8, 9, 10, 11, 12, 13, 14, 15], 2: [0, 1, 2, 3, 4, 5, 6, 7], 3: [8, 9, 10, 11, 12, 13, 14, 15]}
def dma_dw():
    e.salu(f"s_add_u32 m0, {sW1024}, {16*PAGE}", "m0", sW1024)
    st["dw"] = e.dma(vDD, sDW, "0")
after = {
    0: lambda: dma_chunk(4),
    1: lambda: dma_chunk(5),
    2: lambda: dma_chunk(6),
    3: lambda: dma_chunk(7),
    4: lambda: (dma_x(8, 0, vDX), dma_x(9, 1, vDX), dma_x(10, 2, vDX), dma_x(11, 3, vDX)),
    5: lambda: (dma_x(12, 4, vDX), dma_x(13, 5, vDX), dma_x(14, 6, vDX), dma_x(15, 7, vDX),
                e.valu(f"v_add_u32 {vDX}, 0x8000, {vDX}", vDX, vDX)),
    6: lambda: (dma_dw(), dma_x(0, 0, vDX), dma_x(1, 1, vDX), dma_x(2, 2, vDX), dma_x(3, 3, vDX)),
    7: lambda: (e.vload("buffer_load_dword", EP0, vFL, sDBG, "0", flags=" sc1")),
}
for j in range(8):
    wp, xp = ST0[j]
    barrier_with([wp, wp + 1, xp], f"c{j}" if j in (0, 4) else None)
    for s_ in range(4):
        ring.reads.append(lambda dst, xp=xp, s_=s_: x_read(dst, xp, s_))
    ring.avail = len(ring.reads)
    for s_ in range(4):
        w_tr(vWT, 4 * j + s_, wp, s_)
        ring.fill()
    after[j]()
    run_segment([g1_mfma(4 * j + s_) for s_ in range(4)], [])

base_idx = len(ring.reads)
for s in (1, 2, 3):
    for j in range(8):
        for s_ in range(4):
            ring.reads.append(lambda dst, p=XQ[s][j], s_=s_: x_read(dst, p, s_))

def merge(F1, F2):
    if not F1: return F2
    out = []; n1 = len(F1); n2 = len(F2); k = 0
    for i, f in enumerate(F1):
        while k < n2 and k * n1 <= i * n2:
            out.append(F2[k]); k += 1
        out.append(f)
    return out + F2[k:]

def dma_group(k):
    F = []
    if "nodma" in XP:
        return F
    if k == 0:
        for j in range(4, 8):
            F.append((9, lambda j=j: dma_x(j, j, vDX)))
        F.append((4, lambda: e.valu(f"v_add_u32 {vDX}, 0x8000, {vDX}", vDX, vDX)))
    elif k == 1:
        for j in range(4):
            F.append((9, lambda j=j: dma_x(8 + j, j, vDX)))
    elif k == 2:
        for j in range(4, 8):
            F.append((9, lambda j=j: dma_x(8 + j, j, vDX)))
    else:
        for j in (2 * (k - 3), 2 * (k - 3) + 1):
            pg = 2 * j if k < 6 else 2 * j - 8
            F.append((9, lambda j=j, pg=pg: dma_w(pg, j, 2, 0)))
            F.append((9, lambda j=j, pg=pg: dma_w(pg, j, 2, 1)))
    return F

def role_bar(role, pages, name, drain=False):
    e.begin_role(role)
    idx = max([page_dma[p] for p in pages], default=-1)
    e.wait_vm(idx)
    if drain:
        e.raw("s_waitcnt lgkmcnt(0)", kind="wait")
    e.barrier()
    e.end_role()
    if name[0] == "a" or "allb" in XP: stamp(name)

def wl(a, b):
    return [(1, lambda f=f: w_tr(vWU, f, 2 * (f // 4) if f < 24 else 2 * (f // 4) - 8, f % 4)) for f in range(a, b)]

def epoch_get():
    ok = e.newlabel("L_eok"); lp = e.newlabel("L_ep")
    e.valu(f"v_cmp_ne_u32 {sCMP}, 0, {EP0}", sCMP, EP0)
    e.nop(2)
    e.salu("s_and_b32 s84, s84, 1", "s84", "s84")
    e.raw(f"s_cbranch_scc1 {ok}", kind="branch")
    e.salu(f"s_mov_b32 {sCNT}, 0", sCNT)
    e.label(lp)
    e.raw("s_sleep 1")
    e.raw(f"buffer_load_dword {EP0}, {vFL}, {sDBG}, 0 offen sc1")
    e.raw("s_waitcnt vmcnt(0)", kind="wait")
    e.valu(f"v_cmp_ne_u32 {sCMP}, 0, {EP0}", sCMP, EP0)
    e.nop(2)
    e.salu("s_and_b32 s84, s84, 1", "s84", "s84")
    e.raw(f"s_cbranch_scc1 {ok}", kind="branch")
    e.salu(f"s_add_u32 {sCNT}, {sCNT}, 1", sCNT, sCNT)
    e.salu(f"s_cmp_lt_u32 {sCNT}, {SPIN_LIMIT}", "scc", sCNT)
    e.raw(f"s_cbranch_scc1 {lp}", kind="branch")
    e.label(ok)
    e.nop(2)
    e.rfl("s70", EP0)
    e.valu(f"v_mov_b32 {EP0}, s70", EP0, "s70")
    e.valu(f"v_not_b32 {EP1}, s70", EP1, "s70")

Q = [[0, 1, 2, 3], [4, 5, 6, 7], [8, 9, 10, 11], [12, 13, 14, 15]]
MQ = [2, 3, 0, 1, 2, 3]
def Mblock(k, F=(), late=()):
    e.comment(f"---- M{k}")
    e.raw("s_setprio 0")
    ring.avail = base_idx + 16 * (k + 1)
    run_segment([g1_mfma(16 * (k % 2) + i) for i in range(13)], [(-2, None)] + list(F))
    run_fillers(list(late))
    run_segment([g1_mfma(16 * (k % 2) + i) for i in range(13, 16)], [])
    e.raw("s_setprio 1")
def out_parts(r):
    F = out_fillers(r)
    return F[:3], F[3:-1], F[-1:]
def prefetch(k):
    ring.avail = base_idx + 16 * (k + 1)
    ring.fill()

barrier_with(Q[2], "k0")
e.raw("s_setprio 1")
e.begin_role("B"); run_fillers(glu_fillers(0, first="B")); e.end_role()
Mblock(0, dma_group(0))
role_bar("B", Q[3], "b1")
e.begin_role("A"); run_fillers(glu_fillers(0, first="A")); e.end_role()
F = [(1, lambda: e.wait_vm(st["dw"]))]
for n in range(20):
    F.append((1, lambda n=n: e.ds_read("ds_read_u16", V(CI + n), vDR, n * 32)))
F += [(9, epoch_get)]
for n in range(10):
    F.append((4, lambda n=n: e.valu(f"v_lshl_or_b32 {V(CW+n)}, {V(CI+2*n+1)}, 16, {V(CI+2*n)}", V(CW + n), [V(CI + 2 * n + 1), V(CI + 2 * n)])))
run_fillers(F)
e.salu(f"s_lshl_b32 {sT3}, {sKC[0]}, 9", sT3, sKC[0])
e.vload("buffer_load_dwordx4", V(CO, 4), vDW2, sW2, sT3)
e.salu(f"s_add_u32 {sT3}, {sT3}, 4096", sT3, sT3)
e.vload("buffer_load_dwordx4", V(CO + 4, 4), vDW2, sW2, sT3)
role_bar("A", Q[3] + Q[0], "a1")
Mblock(1, dma_group(1))
role_bar("B", Q[0], "b2")
run_fillers(glu_fillers(1))
prefetch(2)
role_bar("A", Q[1], "a2")
def halo_flag():
    e.begin_role("A"); flag_store("halo_store", sHF, 0); e.end_role()
pre, main, post0 = out_parts(0)
Mblock(2, [(9, halo_flag)] + dma_group(2), pre)
role_bar("B", Q[1], "b3")
run_fillers(main)
prefetch(3)
role_bar("A", Q[2], "a3")
def halo_poll():
    e.begin_role("B"); st["hp"] = poll_issue(vFL, sNF); e.end_role()
Mblock(3, post0 + dma_group(3) + [(9, halo_poll)])
role_bar("B", Q[2], "b4")
run_fillers(glu_fillers(2))
e.begin_role("B")
poll_check(1, st["hp"], maskreg=sNEEDH)
e.valu(f"v_lshlrev_b32 v{TT}, 3, {vL}", V(TT), vL)
e.vload("buffer_load_dwordx2", V(POL0i, 2), V(TT), sWS, sND, flags=" sc1")
e.end_role()
prefetch(4)
role_bar("A", Q[3], "a4")
pre, main, post1 = out_parts(1)
Mblock(4, [(9, lambda: flag_store(("S", 0), sFB, 0))] + dma_group(4), pre)
role_bar("B", Q[3] + Q[0], "b5")
e.ds_write("ds_write_b64", vHP2, V(POL0i, 2), 0)
e.valu(f"v_add_u32 {vWU[1]}, 0x10000, {vWU[0]}", vWU[1], vWU[0])
run_fillers(main)
prefetch(5)
role_bar("A", Q[0], "a5")
Mblock(5, post1 + merge(wl(0, 8), dma_group(5)))
role_bar("B", Q[1], "b6", drain=True)

TQ = [0, 3, 2, 1]
def dma_T(i):
    e.salu(f"s_add_u32 m0, {sW4096}, {TQ[i]*4*PAGE}", "m0", sW4096)
    e.salu(f"s_add_u32 {sT3}, {sLB}, {i*32768}", sT3, sLB)
    for q in range(4):
        idx = e.dma(vSO, sWS, sT3, off=q * 1024, flags=" sc1")
    for p in Q[TQ[i]]:
        page_dma[p] = idx
def poll_tile(i):
    e.salu(f"s_add_u32 {sT1}, {sPB}, {i*1024}", sT1, sPB)
    return poll_issue(vPF, sT1)

e.begin_role("B"); e.raw("s_setprio 2"); e.end_role()
G3 = glu_fillers(3)
run_fillers(G3[:30])
flag_store(("S", 1), sFB, 1024)
tp = poll_tile(0)
run_fillers(G3[30:])
role_bar("A", Q[1], "a6", drain=True)
poll_check(0xF, tp)
dma_T(0)
O2 = merge(out_fillers(2), wl(8, 16))
run_fillers(O2[:40])
tp = poll_tile(1)
run_fillers(O2[40:])
stamp("o2")
O3 = out_fillers(3)
run_fillers(O3[:5])
poll_check(0xF, tp)
dma_T(1)
run_fillers(O3[5:30])
flag_store(("S", 2), sFB, 2048)
run_fillers(O3[30:])
e.wait_all(vm=False, ds=True)
barrier_with(Q[0] + Q[3] + Q[2], "B2")
e.raw("s_setprio 0")
for f in range(32):
    ring.reads.append(lambda dst, f=f: e.ds_read("ds_read_b128", V(dst, 4), vSA, f * 1024))
ring.avail = len(ring.reads)
run_segment([g2_mfma(f) for f in range(1)], [])
flag_store(("S", 3), sFB, 3072)
run_segment([g2_mfma(f) for f in range(1, 6)], merge(wl(16, 24), dma_group(6)), lead=2)
run_segment([g2_mfma(f) for f in range(6, 14)], [])
tp = poll_tile(2)
run_segment([g2_mfma(f) for f in range(14, 16)], [])
e.wait_ds(max(e.pend_ds.get(f"a{i}", -1) for i in range(64, 96)))
barrier_with(Q[1], "B3")
run_segment([g2_mfma(f) for f in range(16, 20)], wl(24, 32), lead=2)
poll_check(0xF, tp)
dma_T(2)
tp = poll_tile(3)
run_segment([g2_mfma(f) for f in range(20, 24)], [])
e.wait_ds(max(e.pend_ds.get(f"a{i}", -1) for i in range(96, 128)))
barrier_with([], "B3b")
poll_check(0xF, tp)
dma_T(3)
stamp('p3b')
run_segment([g2_mfma(f) for f in range(24, 32)], [])

def out_epilogue(second):
    for j in range(8):
        e.valu(f"v_cvt_pk_bf16_f32 {V(TT+j)}, {V(E+2*j)}, {V(E+2*j+1)}", V(TT + j), [V(E + 2 * j), V(E + 2 * j + 1)])
    e.vstore("buffer_store_dwordx4", V(TT, 4), vOUT, sOUT, "0")
    e.vstore("buffer_store_dwordx4", V(TT + 4, 4), vOUT, sOUT, "0", off=16)

e.valu(f"v_xor_b32 {vSA}, 0x10000, {vSA}", vSA, vSA)
out_epilogue(False)
e.valu(f"v_add_u32 {vOUT}, 0x10000, {vOUT}", vOUT, vOUT)
barrier_with(Q[2] + Q[1], "B4")
for f in range(32):
    ring.reads.append(lambda dst, f=f: e.ds_read("ds_read_b128", V(dst, 4), vSA, f * 1024))
ring.avail = len(ring.reads)
run_segment([g2_mfma(f) for f in range(32)], [])
stamp('g2end')
out_epilogue(True)
if HDIAG:
    e.wait_all()
    stamp('end')
if DIAG:
    e.wait_all()
    stamp('end')
    e.raw(f"s_memrealtime {sST[0]}", kind="smem")
    e.raw("s_waitcnt lgkmcnt(0)", kind="wait")
    e.valu("v_mov_b32 v110, s88", "v110", [])
    e.vstore("buffer_store_dword", "v110", vFL, sWS, sDG, off=8)
e.label("L_end")

header = open(os.path.join(os.path.dirname(__file__), "header.txt")).read()
src = header + f"""; @launch grid=(256,1,1) block=(512,1,1) lds={LDS_BYTES}
.amdgcn_target "amdgcn-amd-amdhsa--gfx950"
.text
.globl {NAME}_kernel
.p2align 8
.type {NAME}_kernel,@function
{NAME}_kernel:
{e.text()}    s_endpgm
.section .rodata,"a"
.p2align 6
.amdhsa_kernel {NAME}_kernel
  .amdhsa_next_free_vgpr 256
  .amdhsa_next_free_sgpr 102
  .amdhsa_accum_offset 128
  .amdhsa_group_segment_fixed_size 0
  .amdhsa_kernarg_size 56
  .amdhsa_user_sgpr_count 2
  .amdhsa_user_sgpr_kernarg_segment_ptr 1
  .amdhsa_system_sgpr_workgroup_id_x 1
.end_amdhsa_kernel
"""
out = OUTP[0] if OUTP else f"cdna_kernels/{NAME}.s"
if DIAG:
    src += "; STAMPS " + " ".join(STAMPS) + "\n"
open(out, "w").write(src)
print("wrote", out, "instr counts", e.count, file=sys.stderr)
```

```python
import sys, os
sys.path.insert(0, os.path.dirname(__file__))
from em import Em, R

NAME = "standalone__conformer_conv_module__speech"
DIAG = "--diag" in sys.argv
HDIAG = "--hdiag" in sys.argv
HNAMES = ["c0", "k0", "a2", "a4", "a6", "o2", "B2", "B4", "end"]
XP = set(a[4:] for a in sys.argv if a.startswith("--x-"))
OUTP = [a for a in sys.argv[1:] if not a.startswith("--")]

PAGE = 8192
HBASE = 17 * PAGE
HS = 160
HW = 16 * HS
DUMMY = HBASE + 8 * HW
LDS_BYTES = 163840
ST0 = [(4, 6), (8, 7), (10, 12), (14, 13), (0, 2), (16, 3), (18, 6), (4, 7)]
WS_S = 0
WS_HALO = 8 << 20
WS_SFLAG = 9 << 20
WS_HFLAG = 10 << 20
WS_DIAG = 11 << 20
WS_BYTES = 16 << 20
OOB = 0x80000000
SPIN_LIMIT = 64 if XP - {'light', 'mini', 'allb', 'nowarm'} else 1 << 18

sX, sW1, sW2, sWS, sOUT, sDW, sDBG = "s[20:23]", "s[24:27]", "s[28:31]", "s[32:35]", "s[36:39]", "s[40:43]", "s[44:47]"
sW, sCG, sP, sM, sG, sMM, sB, sC0 = "s48", "s49", "s50", "s51", "s52", "s53", "s54", "s55"
sKC = [f"s{56+j}" for j in range(8)]
sW1024, sW2048, sT0, sT1, sT2, sT3 = "s64", "s65", "s66", "s67", "s68", "s69"
sRT = "s[70:71]"
sSB = "s72"
sFB = "s73"
sHD = "s74"
sHF = "s75"
sND = "s76"
sNF = "s77"
sLB = "s78"
sPB = "s79"
sNEEDH = "s80"
sCNT = "s81"
sW4096 = "s82"
sCMP = "s[84:85]"
sDG = "s86"
sGP = "s87"
sLB2 = "s19"
sCM2 = "s[100:101]"
sST = [f"s[{88+2*i}:{89+2*i}]" for i in range(6)]
vL = "v1"
vXA = [f"v{2+i}" for i in range(4)]
vXB = [f"v{6+i}" for i in range(4)]
vDX, vDX0, vDW1, vDW2 = "v10", "v11", "v12", "v13"
vHW, vHP1, vHP2 = "v14", "v15", "v120"
ACC, E = 16, 32
AF = [48 + 4 * i for i in range(6)]
CW = 72
vFL, vPF = "v82", "v83"
CI = 84
CO = 96
TT = 104
UU = 112
SF = 116
vHR, vHR1, vHR2, vSR, vSO, vSA, vOUT = "v121", "v122", "v123", "v124", "v125", "v126", "v127"
vWT = ["v84", "v85", "v86"]
vWU = ["v10", "v11"]
vEP = "v[12:13]"
EPR = 0
LOG2E_NEG = "s83"
vDD, vDR = "v116", "v117"

e = Em()

def V(i, n=1): return R("v", i, n)
def A(i, n=1): return R("a", i, n)

EP0, EP1 = "v68", "v69"
POL0, POL1 = "v70", "v71"
POL0i = 70
AF = AF[:5]

STAMPS = []
def hstamp(name):
    i = HNAMES.index(name)
    e.wait_all(vm=False, ds=True)
    e.raw(f"s_memrealtime {sST[0]}", kind="smem")
    e.raw("s_waitcnt lgkmcnt(0)", kind="wait")
    e.salu(f"s_mov_b32 s{93+i}, s88", f"s{93+i}")
    if name == "end":
        e.salu(f"s_lshl_b32 s92, {sW}, 9", "s92", sW)
        e.valu("v_not_b32 v110, s91", "v110", [])
        e.vstore("buffer_atomic_umax", "v110", vFL, sDBG, "s92", off=8)
        e.valu("v_mov_b32 v111, s88", "v111", [])
        e.vstore("buffer_atomic_umax", "v111", vFL, sDBG, "s92", off=12)
        e.salu("s_cmp_eq_u32 s2, 100", "scc")
        e.salu("s_cselect_b32 s92, s92, 512", "s92", "s92")
        e.valu("v_mov_b32 v109, s91", "v109", [])
        e.vstore("buffer_store_dword", "v109", vFL, sDBG, "s92", off=16)
        for j in range(len(HNAMES)):
            e.valu(f"v_mov_b32 v{96+j}, s{93+j}", f"v{96+j}", [])
            e.vstore("buffer_store_dword", f"v{96+j}", vFL, sDBG, "s92", off=20 + 4 * j)
MST = []
def mstamp(name):
    if not DIAG or "mini" not in XP:
        return
    assert len(MST) < 4
    r = 92 + 2 * len(MST)
    e.raw(f"s_memtime s[{r}:{r+1}]", kind="smem")
    MST.append((name, r))
def stamp(name):
    if HDIAG and name in HNAMES:
        hstamp(name)
    if not DIAG:
        return
    if MST:
        e.wait_all(vm=False, ds=True)
        for nm, r in MST:
            STAMPS.append(nm); i = 2 + len(STAMPS)
            e.valu(f"v_mov_b32 v110, s{r}", "v110", [])
            e.vstore("buffer_store_dword", "v110", vFL, sWS, sDG, off=4 * i)
        MST.clear()
    STAMPS.append(str(name)); i = 2 + len(STAMPS)
    e.wait_all(vm=False, ds=True)
    e.raw(f"s_memtime {sST[0]}", kind="smem")
    e.raw("s_waitcnt lgkmcnt(0)", kind="wait")
    e.valu(f"v_mov_b32 v110, {sST[0].replace('[88:89]','88')}", "v110", [])
    e.vstore("buffer_store_dword", "v110", vFL, sWS, sDG, off=4 * i)

e.salu("s_cmp_ge_u32 s2, 256")
e.raw("s_cbranch_scc1 L_end", kind="branch")
e.raw("s_load_dwordx8 s[4:11], s[0:1], 0", kind="smem")
e.raw("s_load_dwordx4 s[12:15], s[0:1], 32", kind="smem")
e.raw("s_load_dwordx2 s[16:17], s[0:1], 48", kind="smem")
e.raw(f"s_memrealtime {sRT}", kind="smem")
if DIAG:
    e.raw(f"s_memtime {sST[1]}", kind="smem")
if "nowarm" not in XP:
    e.raw("s_getpc_b64 s[40:41]", kind="salu")
    e.label("L_pc")
    e.salu("s_mov_b32 s42, L_end-L_pc", "s42")
    e.salu("s_mov_b32 s43, 0x00020000", "s43")
    e.valu("v_lshlrev_b32 v104, 4, v0", "v104", "v0")
    e.salu("s_mov_b32 s66, 8192", "s66")
    e.vload("buffer_load_dwordx4", "v[96:99]", "v104", "s[40:43]", "0")
    e.vload("buffer_load_dwordx4", "v[100:103]", "v104", "s[40:43]", "s66")
e.valu("v_lshrrev_b32 v104, 6, v0", "v104", "v0")
e.valu(f"v_and_b32 {vL}, 63, v0", vL, "v0")
e.rfl(sW, "v104")
e.salu(f"s_and_b32 {sT0}, s2, 7", sT0)
e.salu(f"s_lshr_b32 {sT1}, s2, 3", sT1)
e.salu(f"s_and_b32 {sG}, {sT1}, 7", sG, sT1)
e.salu(f"s_lshr_b32 {sT1}, {sT1}, 3", sT1, sT1)
e.salu(f"s_lshl_b32 {sM}, {sT0}, 2", sM, sT0)
e.salu(f"s_add_u32 {sM}, {sM}, {sT1}", sM, [sM, sT1])
e.salu(f"s_and_b32 {sMM}, {sM}, 15", sMM, sM)
e.salu(f"s_lshr_b32 {sB}, {sM}, 4", sB, sM)
e.salu(f"s_lshl_b32 {sT1}, {sT1}, 1", sT1, sT1)
e.salu(f"s_add_u32 {sC0}, {sG}, {sT1}", sC0, [sG, sT1])
e.salu(f"s_and_b32 {sCG}, {sW}, 3", sCG, sW)
e.salu(f"s_lshr_b32 {sP}, {sW}, 2", sP, sW)
e.salu(f"s_lshl_b32 {sW1024}, {sW}, 10", sW1024, sW)
e.salu(f"s_lshl_b32 {sW2048}, {sW}, 11", sW2048, sW)
for j in range(8):
    e.salu(f"s_add_u32 {sKC[j]}, {sC0}, {j}", sKC[j], sC0)
    e.salu(f"s_and_b32 {sKC[j]}, {sKC[j]}, 7", sKC[j], sKC[j])
    e.salu(f"s_lshl_b32 {sKC[j]}, {sKC[j]}, 7", sKC[j], sKC[j])
e.valu(f"v_lshrrev_b32 v104, 4, {vL}", "v104", vL)
e.valu(f"v_and_b32 v105, 7, {vL}", "v105", vL)
e.valu("v_lshlrev_b32 v106, 1, v104", "v106", "v104")
e.valu("v_xor_b32 v106, v106, v105", "v106", ["v106", "v105"])
e.valu("v_lshlrev_b32 v106, 4, v106", "v106", "v106")
e.valu(f"v_bfe_u32 v107, {vL}, 3, 1", "v107", vL)
e.valu("v_lshl_add_u32 v106, v107, 10, v106", "v106", ["v107", "v106"])
e.valu("v_lshl_add_u32 v106, v104, 11, v106", "v106", ["v104", "v106"])
e.salu(f"s_lshl_b32 {sT0}, {sW}, 14", sT0, sW)
e.salu(f"s_lshl_b32 {sT1}, {sG}, 7", sT1, sG)
e.salu(f"s_add_u32 {sT0}, {sT0}, {sT1}", sT0, [sT0, sT1])
e.valu(f"v_add_u32 {vDW1}, {sT0}, v106", vDW1, [sT0, "v106"])
e.valu(f"v_lshrrev_b32 v104, 3, {vL}", "v104", vL)
e.salu(f"s_lshl_b32 {sT0}, {sCG}, 3", sT0, sCG)
e.valu(f"v_add_u32 v104, {sT0}, v104", "v104", [sT0, "v104"])
e.valu("v_bfe_u32 v106, v104, 1, 3", "v106", "v104")
e.valu("v_xor_b32 v106, v106, v105", "v106", ["v106", "v105"])
e.salu(f"s_lshl_b32 {sT0}, {sMM}, 8", sT0, sMM)
e.salu(f"s_lshl_b32 {sT1}, {sP}, 7", sT1, sP)
e.salu(f"s_add_u32 {sT0}, {sT0}, {sT1}", sT0, [sT0, sT1])
e.salu(f"s_sub_u32 {sT0}, {sT0}, 7", sT0, sT0)
e.valu(f"v_add_u32 v104, {sT0}, v104", "v104", [sT0, "v104"])
e.valu("v_lshlrev_b32 v107, 10, v104", "v107", "v104")
e.valu("v_lshl_add_u32 v107, v106, 4, v107", "v107", ["v106", "v107"])
e.valu("v_cmp_gt_i32 vcc, 0, v104", "vcc", "v104")
e.valu(f"v_mov_b32 v106, {hex(OOB)}", "v106", [])
e.valu(f"v_cndmask_b32 {vDX0}, v107, v106, vcc", vDX0, ["v107", "v106", "vcc"])
e.valu(f"v_add_u32 {vDX}, 0x8000, v107", vDX, "v107")
e.raw("s_waitcnt lgkmcnt(0)", kind="wait")
e.salu(f"s_mul_i32 {sT0}, {sB}, 4096000", sT0, sB)
e.salu("s_mov_b32 s24, s6", "s24"); e.salu("s_mov_b32 s25, s7", "s25")
e.salu("s_mov_b32 s26, 1048576", "s26"); e.salu("s_mov_b32 s27, 0x00020000", "s27")
e.salu(f"s_add_u32 s20, s4, {sT0}", "s20", sT0); e.salu("s_addc_u32 s21, s5, 0", "s21")
e.salu("s_mov_b32 s22, 4096000", "s22"); e.salu("s_mov_b32 s23, 0x00020000", "s23")

page_dma = {}

def dma_x(page, j, voff):
    e.salu(f"s_add_u32 m0, {sW1024}, {page*PAGE}", "m0", sW1024)
    page_dma[page] = e.dma(voff, sX, sKC[j])

def dma_w(page, j, which, part=None):
    sh, srd, voff, row4 = (10, sW1, vDW1, 8192) if which == 1 else (9, sW2, vDW2, 4096)
    e.salu(f"s_add_u32 m0, {sW2048}, {page*PAGE}", "m0", sW2048)
    e.salu(f"s_lshl_b32 {sT3}, {sKC[j]}, {sh}", sT3, sKC[j])
    if part in (None, 0):
        e.dma(voff, srd, sT3)
    if part in (None, 1):
        e.salu(f"s_add_u32 {sT3}, {sT3}, {row4-1024}", sT3, sT3)
        idx = e.dma(voff, srd, sT3, off=1024)
        page_dma[page] = idx; page_dma[page + 1] = idx

def dma_chunk(j):
    dma_w(ST0[j][0], j, 1)
    dma_x(ST0[j][1], j, vDX0)
dma_chunk(0)

e.salu("s_mov_b32 s28, s10", "s28"); e.salu("s_mov_b32 s29, s11", "s29")
e.salu("s_mov_b32 s30, 524288", "s30"); e.salu("s_mov_b32 s31, 0x00020000", "s31")
e.salu("s_mov_b32 s32, s16", "s32"); e.salu("s_mov_b32 s33, s17", "s33")
e.salu(f"s_mov_b32 s34, {WS_BYTES}", "s34"); e.salu("s_mov_b32 s35, 0x00020000", "s35")
e.salu(f"s_add_u32 s36, s12, {sT0}", "s36", sT0); e.salu("s_addc_u32 s37, s13, 0", "s37")
e.salu("s_mov_b32 s38, 4096000", "s38"); e.salu("s_mov_b32 s39, 0x00020000", "s39")
e.salu("s_mov_b32 s40, s8", "s40"); e.salu("s_mov_b32 s41, s9", "s41")
e.salu("s_mov_b32 s42, 15360", "s42"); e.salu("s_mov_b32 s43, 0x00020000", "s43")
e.salu("s_mov_b32 s44, s14", "s44"); e.salu("s_mov_b32 s45, s15", "s45")
e.salu("s_mov_b32 s46, 256", "s46"); e.salu("s_mov_b32 s47, 0x00020000", "s47")
e.valu(f"v_mov_b32 v106, {hex(OOB)}", "v106", [])
e.valu(f"v_cmp_eq_u32 vcc, 0, {vL}", "vcc", vL)
e.valu(f"v_cndmask_b32 {vFL}, v106, {vL}, vcc", vFL, ["v106", vL, "vcc"])
e.salu("s_mov_b32 s91, s70", "s91", "s70")
e.salu("s_or_b32 s70, s70, 1", "s70", "s70")
e.salu("s_lshl_b32 s71, s2, 10", "s71")
e.valu("v_add_u32 v104, s71, v0", "v104", ["s71", "v0"])
e.valu("v_cmp_eq_u32 vcc, 0, v104", "vcc", "v104")
e.valu("v_cndmask_b32 v104, v106, v104, vcc", "v104", ["v106", "v104", "vcc"])
e.valu("v_mov_b32 v105, s70", "v105", "s70")
e.vstore("buffer_store_dword", "v105", "v104", sDBG, "0", flags=" sc1")
e.valu(f"v_lshrrev_b32 v104, 2, {vL}", "v104", vL)
e.valu(f"v_and_b32 v105, 3, {vL}", "v105", vL)
e.salu(f"s_lshl_b32 {sT0}, {sG}, 7", sT0, sG)
e.salu(f"s_lshl_b32 {sT1}, {sCG}, 5", sT1, sCG)
e.salu(f"s_add_u32 {sT0}, {sT0}, {sT1}", sT0, [sT0, sT1])
e.salu(f"s_sub_u32 {sT0}, {sT0}, 3072", sT0, sT0)
e.valu(f"v_lshrrev_b32 v106, 1, {vL}", "v106", vL)
e.valu(f"v_lshl_add_u32 v106, v106, 10, {sT0}", "v106", ["v106", sT0])
e.valu(f"v_and_b32 v107, 1, {vL}", "v107", vL)
e.valu(f"v_lshl_add_u32 {vDD}, v107, 4, v106", vDD, ["v107", "v106"])
e.salu(f"s_add_u32 {sT1}, {sW1024}, {16*PAGE + 96}", sT1, sW1024)
e.valu(f"v_lshl_add_u32 v106, v104, 1, {sT1}", "v106", ["v104", sT1])
e.valu("v_lshlrev_b32 v107, 5, v105", "v107", "v105")
e.valu(f"v_sub_u32 {vDR}, v106, v107", vDR, ["v106", "v107"])
e.salu(f"s_mov_b32 {LOG2E_NEG}, 0xbfb8aa3b", LOG2E_NEG)
dma_chunk(1)
e.salu(f"s_mul_i32 {sT0}, {sW}, {HW}", sT0, sW)
e.salu(f"s_add_u32 {sT0}, {sT0}, {HBASE}", sT0, sT0)
e.valu(f"v_mul_u32_u24 v106, {HS}, v104", "v106", "v104")
e.valu("v_lshl_add_u32 v106, v105, 4, v106", "v106", ["v105", "v106"])
e.valu(f"v_add_u32 {vHR}, {sT0}, v106", vHR, [sT0, "v106"])
e.valu(f"v_subrev_u32 v107, 128, {vHR}", "v107", vHR)
e.valu("v_cmp_eq_u32 vcc, 3, v105", "vcc", "v105")
e.valu(f"v_cndmask_b32 {vHR1}, {vHR}, v107, vcc", vHR1, [vHR, "v107", "vcc"])
e.valu("v_cmp_lt_u32 vcc, 1, v105", "vcc", "v105")
e.valu(f"v_cndmask_b32 {vHR2}, {vHR}, v107, vcc", vHR2, [vHR, "v107", "vcc"])
e.valu(f"v_and_b32 v106, 15, {vL}", "v106", vL)
e.valu(f"v_mul_u32_u24 v106, {HS}, v106", "v106", "v106")
e.valu(f"v_bfe_u32 v107, {vL}, 4, 1", "v107", vL)
e.valu("v_lshl_add_u32 v106, v107, 4, v106", "v106", ["v107", "v106"])
e.valu(f"v_lshrrev_b32 v108, 5, {vL}", "v108", vL)
e.valu("v_lshl_add_u32 v106, v108, 3, v106", "v106", ["v108", "v106"])
e.valu(f"v_add_u32 {vHW}, {sT0}, v106", vHW, [sT0, "v106"])
e.salu(f"s_cmp_eq_u32 {sP}, 0", "scc", sP)
e.salu(f"s_sub_u32 {sT1}, {sT0}, {4*HW - 128}", sT1, sT0)
e.salu(f"s_cmp_eq_u32 {sP}, 0", "scc", sP)
e.salu(f"s_cselect_b32 {sT1}, {DUMMY}, {sT1}", sT1, [sT1, "scc"])
e.valu(f"v_add_u32 {vHP1}, {sT1}, v106", vHP1, [sT1, "v106"])
e.salu(f"s_add_u32 {sT1}, {sT0}, 128", sT1, sT0)
e.salu(f"s_cmp_eq_u32 {sP}, 0", "scc", sP)
e.salu(f"s_cselect_b32 {sT1}, {DUMMY}, {sT1}", sT1, [sT1, "scc"])
e.valu(f"v_add_u32 {vHP2}, {sT1}, v106", vHP2, [sT1, "v106"])
e.valu(f"v_bfe_u32 v109, {vL}, 2, 2", "v109", vL)
e.valu("v_lshl_add_u32 v106, v108, 3, v109", "v106", ["v108", "v109"])
e.valu(f"v_mul_u32_u24 v106, {HS}, v106", "v106", "v106")
e.valu("v_lshl_add_u32 v106, v107, 5, v106", "v106", ["v107", "v106"])
e.valu("v_lshl_add_u32 v106, v105, 3, v106", "v106", ["v105", "v106"])
e.valu(f"v_add_u32 {vSR}, {sT0}, v106", vSR, [sT0, "v106"])
e.valu("v_lshl_add_u32 v106, v108, 3, v109", "v106", ["v108", "v109"])
e.valu("v_lshlrev_b32 v106, 8, v106", "v106", "v106")
e.valu("v_lshrrev_b32 v110, 1, v105", "v110", "v105")
e.salu(f"s_lshl_b32 {sT1}, {sCG}, 1", sT1, sCG)
e.valu(f"v_add_u32 v110, {sT1}, v110", "v110", [sT1, "v110"])
e.valu("v_lshlrev_b32 v111, 1, v109", "v111", "v109")
e.valu("v_xor_b32 v110, v110, v111", "v110", ["v110", "v111"])
e.valu("v_lshl_add_u32 v110, v110, 4, v106", "v110", ["v110", "v106"])
e.valu("v_lshl_add_u32 v110, v107, 7, v110", "v110", ["v107", "v110"])
e.valu("v_and_b32 v111, 1, v105", "v111", "v105")
e.valu(f"v_lshl_add_u32 {vWT[0]}, v111, 3, v110", vWT[0], ["v111", "v110"])
e.valu(f"v_add_u32 {vWT[1]}, 0x10000, {vWT[0]}", vWT[1], vWT[0])
e.valu(f"v_add_u32 {vWT[2]}, 0x20000, {vWT[0]}", vWT[2], vWT[0])
e.valu(f"v_xor_b32 v110, {sCG}, v109", "v110", [sCG, "v109"])
e.valu("v_lshl_add_u32 v110, v110, 6, v106", "v110", ["v110", "v106"])
e.valu("v_lshl_add_u32 v110, v111, 5, v110", "v110", ["v111", "v110"])
e.valu("v_lshl_add_u32 v110, v107, 4, v110", "v110", ["v107", "v110"])
e.valu("v_lshrrev_b32 v111, 1, v105", "v111", "v105")
e.valu("v_lshl_add_u32 v0, v111, 3, v110", "v0", ["v111", "v110"])
vWU = ["v0", "v11"]
dma_chunk(2)
e.valu(f"v_and_b32 v106, 31, {vL}", "v106", vL)
e.valu("v_bfe_u32 v110, v106, 1, 3", "v110", "v106")
e.valu("v_xor_b32 v110, v110, v108", "v110", ["v110", "v108"])
e.salu(f"s_lshl_b32 {sT1}, {sP}, 12", sT1, sP)
e.valu(f"v_lshl_add_u32 v106, v106, 7, {sT1}", "v106", ["v106", sT1])
for s_ in range(4):
    e.valu(f"v_xor_b32 v111, {2*s_}, v110", "v111", "v110")
    e.valu(f"v_lshl_add_u32 {vXA[s_]}, v111, 4, v106", vXA[s_], ["v111", "v106"])
    e.valu(f"v_add_u32 {vXB[s_]}, 0x10000, {vXA[s_]}", vXB[s_], vXA[s_])
dma_chunk(3)
e.valu(f"v_lshrrev_b32 v106, 4, {vL}", "v106", vL)
e.valu("v_xor_b32 v110, v109, v106", "v110", ["v109", "v106"])
e.valu("v_lshl_add_u32 v110, v110, 2, v105", "v110", ["v110", "v105"])
e.valu("v_lshlrev_b32 v110, 4, v110", "v110", "v110")
e.valu("v_lshl_add_u32 v110, v106, 10, v110", "v110", ["v106", "v110"])
e.salu(f"s_lshl_b32 {sT0}, {sW}, 13", sT0, sW)
e.salu(f"s_lshr_b32 {sT1}, {sG}, 1", sT1, sG)
e.salu(f"s_lshl_b32 {sT1}, {sT1}, 8", sT1, sT1)
e.salu(f"s_add_u32 {sT0}, {sT0}, {sT1}", sT0, [sT0, sT1])
e.valu(f"v_add_u32 {vDW2}, {sT0}, v110", vDW2, [sT0, "v110"])
e.salu(f"s_lshl_b32 {sT0}, {sCG}, 6", sT0, sCG)
e.salu(f"s_add_u32 {sT1}, {sT1}, {sT0}", sT1, [sT1, sT0])
e.salu(f"s_and_b32 {sT0}, {sG}, 1", sT0, sG)
e.salu(f"s_lshl_b32 {sT2}, {sT0}, 17", sT2, sT0)
e.salu(f"s_add_u32 {sT1}, {sT1}, {sT2}", sT1, [sT1, sT2])
e.salu(f"s_lshl_b32 {sT2}, {sMM}, 18", sT2, sMM)
e.salu(f"s_add_u32 {sT1}, {sT1}, {sT2}", sT1, [sT1, sT2])
e.salu(f"s_lshl_b32 {sT2}, {sP}, 15", sT2, sP)
e.salu(f"s_add_u32 {sT1}, {sT1}, {sT2}", sT1, [sT1, sT2])
e.valu(f"v_and_b32 v106, 31, {vL}", "v106", vL)
e.valu(f"v_lshl_add_u32 v106, v106, 10, {sT1}", "v106", ["v106", sT1])
e.valu(f"v_lshl_add_u32 {vOUT}, v108, 5, v106", vOUT, ["v108", "v106"])
e.valu(f"v_lshlrev_b32 {vSO}, 4, {vL}", vSO, vL)
e.salu(f"s_mul_i32 {sT1}, {sP}, 98304", sT1, sP)
e.valu(f"v_add_u32 {vSA}, {sT1}, {vSO}", vSA, [sT1, vSO])
e.salu(f"s_add_u32 {sT1}, {sC0}, {sW}", sT1, [sC0, sW])
e.salu(f"s_and_b32 {sGP}, {sT1}, 7", sGP, sT1)
e.valu("v_lshlrev_b32 v106, 2, v104", "v106", "v104")
e.valu(f"v_xor_b32 v106, {sGP}, v106", "v106", [sGP, "v106"])
e.valu("v_lshlrev_b32 v106, 7, v106", "v106", "v106")
e.valu("v_lshl_add_u32 v106, v105, 3, v106", "v106", ["v105", "v106"])
e.valu(f"v_mov_b32 v110, {hex(OOB)}", "v110", [])
e.valu(f"v_cmp_gt_u32 vcc, 8, {vL}", "vcc", vL)
e.valu(f"v_cndmask_b32 {vPF}, v110, v106, vcc", vPF, ["v110", "v106", "vcc"])
e.salu(f"s_lshl_b32 {sT1}, {sG}, 2", sT1, sG)
e.salu(f"s_add_u32 {sT1}, {sT1}, {sCG}", sT1, [sT1, sCG])
e.salu(f"s_lshl_b32 {sT2}, {sM}, 3", sT2, sM)
e.salu(f"s_lshl_b32 {sT3}, {sP}, 2", sT3, sP)
e.salu(f"s_add_u32 {sT3}, {sT3}, {sT2}", sT3, [sT3, sT2])
e.salu(f"s_lshl_b32 {sSB}, {sT3}, 5", sSB, sT3)
e.salu(f"s_add_u32 {sSB}, {sSB}, {sT1}", sSB, [sSB, sT1])
e.salu(f"s_lshl_b32 {sSB}, {sSB}, 10", sSB, sSB)
e.salu(f"s_lshl_b32 {sFB}, {sT3}, 3", sFB, sT3)
e.salu(f"s_add_u32 {sFB}, {sFB}, {sG}", sFB, [sFB, sG])
e.salu(f"s_lshl_b32 {sFB}, {sFB}, 7", sFB, sFB)
e.salu(f"s_lshl_b32 {sT3}, {sCG}, 3", sT3, sCG)
e.salu(f"s_add_u32 {sFB}, {sFB}, {sT3}", sFB, [sFB, sT3])
e.salu(f"s_add_u32 {sFB}, {sFB}, {WS_SFLAG}", sFB, sFB)
e.salu(f"s_lshl_b32 {sT3}, {sM}, 5", sT3, sM)
e.salu(f"s_add_u32 {sT3}, {sT3}, {sT1}", sT3, [sT3, sT1])
e.salu(f"s_lshl_b32 {sHD}, {sT3}, 9", sHD, sT3)
e.salu(f"s_add_u32 {sHD}, {sHD}, {WS_HALO}", sHD, sHD)
e.salu(f"s_add_u32 {sND}, {sHD}, {32*512}", sND, sHD)
e.salu(f"s_lshl_b32 {sHF}, {sT3}, 7", sHF, sT3)
e.salu(f"s_add_u32 {sHF}, {sHF}, {WS_HFLAG}", sHF, sHF)
e.salu(f"s_add_u32 {sNF}, {sHF}, {32*128}", sNF, sHF)
e.salu(f"s_cmp_lg_u32 {sMM}, 15", "scc", sMM)
e.salu(f"s_cselect_b32 {sNEEDH}, 1, 0", sNEEDH, ["scc"])
e.salu(f"s_lshl_b32 {sT3}, {sT0}, 2", sT3, sT0)
e.salu(f"s_add_u32 {sT3}, {sT3}, {sT2}", sT3, [sT3, sT2])
e.salu(f"s_lshl_b32 {sPB}, {sT3}, 10", sPB, sT3)
e.salu(f"s_add_u32 {sPB}, {sPB}, {WS_SFLAG}", sPB, sPB)
e.salu(f"s_lshl_b32 {sT3}, {sT3}, 3", sT3, sT3)
e.salu(f"s_add_u32 {sLB}, {sT3}, {sGP}", sLB, [sT3, sGP])
e.salu(f"s_lshl_b32 {sLB}, {sLB}, 12", sLB, sLB)
e.salu(f"s_xor_b32 {sLB2}, {sLB}, 16384", sLB2, sLB)
e.salu(f"s_cmp_eq_u32 {sP}, 1", "scc", sP)
e.salu("s_cselect_b64 vcc, -1, 0", "vcc", "scc")
e.salu(f"s_lshl_b32 {sW4096}, {sW}, 12", sW4096, sW)
if DIAG:
    e.salu(f"s_lshl_b32 {sDG}, s2, 3", sDG)
    e.salu(f"s_add_u32 {sDG}, {sDG}, {sW}", sDG, [sDG, sW])
    e.salu(f"s_lshl_b32 {sDG}, {sDG}, 8", sDG, sDG)
    e.salu(f"s_add_u32 {sDG}, {sDG}, {WS_DIAG}", sDG, sDG)
    e.valu("v_mov_b32 v110, s90", "v110", [])
    e.vstore("buffer_store_dword", "v110", vFL, sWS, sDG, off=0)
    e.valu("v_mov_b32 v110, s70", "v110", [])
    e.vstore("buffer_store_dword", "v110", vFL, sWS, sDG, off=4)
stamp('pro')

def barrier_with(pages, name=None):
    idx = max([page_dma[p] for p in pages], default=-1)
    if name and "light" not in XP: stamp(name + ".pre")
    if idx >= 0:
        e.wait_vm(idx)
    if name and "light" not in XP: stamp(name + ".vm")
    e.barrier()
    if name: stamp(name)

def x_read(dst, page, s_):
    base = vXA if page < 8 else vXB
    e.ds_read("ds_read_b128", V(dst, 4), base[s_], (page % 8) * PAGE)

def w_tr(bases, f, page, s_):
    for ee in range(2):
        addr = page * PAGE + 4096 * s_ + 1024 * ee
        e.ds_read("ds_read_b64_tr_b16", A(4 * f + 2 * ee, 2), bases[addr >> 16], addr & 0xffff)

def poll_check(mask, load, maskreg=None):
    ok = e.newlabel("L_ok"); lp = e.newlabel("L_poll")
    def chk():
        e.valu(f"v_cmp_eq_u32 {sCM2}, {EP0}, {POL0}", sCM2, [EP0, POL0])
        e.valu(f"v_cmp_eq_u32 {sCMP}, {EP1}, {POL1}", sCMP, [EP1, POL1])
        e.nop(2)
        e.salu("s_and_b32 s84, s84, s100", "s84", ["s84", "s100"])
        mk = maskreg if maskreg else str(mask)
        e.salu(f"s_and_b32 s84, s84, {mk}", "s84", "s84")
        e.salu(f"s_cmp_eq_u32 s84, {mk}", "scc", "s84")
        e.raw(f"s_cbranch_scc1 {ok}", kind="branch")
    chk()
    e.salu(f"s_mov_b32 {sCNT}, 0", sCNT)
    e.label(lp)
    e.raw("s_sleep 1", kind="other")
    e.raw(load, kind="other")
    e.raw("s_waitcnt vmcnt(0)", kind="wait")
    chk()
    e.salu(f"s_add_u32 {sCNT}, {sCNT}, 1", sCNT, sCNT)
    e.salu(f"s_cmp_lt_u32 {sCNT}, {SPIN_LIMIT}", "scc", sCNT)
    e.raw(f"s_cbranch_scc1 {lp}", kind="branch")
    e.label(ok)
    e.nop(2)

def poll_issue(voff, soff):
    e.vload("buffer_load_dwordx2", f"v[{POL0[1:]}:{POL1[1:]}]", voff, sWS, soff, flags=" sc1")
    return f"buffer_load_dwordx2 v[{POL0[1:]}:{POL1[1:]}], {voff}, {sWS}, {soff} offen sc1"

def glu_fillers(r, first=False):
    F = []
    slot = r % 2
    for gp in (0, 2):
        a = [E + 4 * gp + j for j in range(4)]
        b = [E + 4 * (gp + 1) + j for j in range(4)]
        for j in range(4):
            F.append((9, lambda a=a[j], b=b[j]: e.perm(V(a), V(b))))
        for j in range(4):
            F.append((4, lambda b=b[j]: e.valu(f"v_mul_f32 {V(b)}, {LOG2E_NEG}, {V(b)}", V(b), V(b))))
        for j in range(4):
            F.append((9, lambda b=b[j]: e.trans(f"v_exp_f32 {V(b)}, {V(b)}", V(b), V(b))))
        for j in range(4):
            F.append((4, lambda b=b[j]: e.valu(f"v_add_f32 {V(b)}, 1.0, {V(b)}", V(b), V(b))))
        for j in range(4):
            F.append((9, lambda b=b[j]: e.trans(f"v_rcp_f32 {V(b)}, {V(b)}", V(b), V(b))))
        for j in range(4):
            F.append((4, lambda a=a[j], b=b[j]: e.valu(f"v_mul_f32 {V(a)}, {V(a)}, {V(b)}", V(a), [V(a), V(b)])))
        u = UU + gp
        F.append((4, lambda a=a, u=u: e.valu(f"v_cvt_pk_bf16_f32 {V(u)}, {V(a[0])}, {V(a[1])}", V(u), [V(a[0]), V(a[1])])))
        F.append((4, lambda a=a, u=u: e.valu(f"v_cvt_pk_bf16_f32 {V(u+1)}, {V(a[2])}, {V(a[3])}", V(u + 1), [V(a[2]), V(a[3])])))
        F.append((1, lambda u=u, gp=gp: e.ds_write("ds_write_b64", vHW, V(u, 2), slot * 64 + gp * 16)))
        if first == "B" and gp == 0:
            F.append((1, lambda u=u: e.ds_write("ds_write_b64", vHP1, V(u, 2), 0)))
        if first == "A" and gp == 0:
            def halo_store(u=u):
                e.valu(f"v_lshlrev_b32 v{TT}, 3, {vL}", V(TT), vL)
                st["halo_store"] = e.vstore("buffer_store_dwordx2", V(u, 2), V(TT), sWS, sHD, flags=" sc1")
            F.append((9, halo_store))
    return F

st = {}
def out_fillers(r):
    F = []
    slot = r % 2
    for u in range(3):
        if r == 1:
            base = [vHR, vHR1, vHR2][u]
        else:
            base = vHR
        F.append((1, lambda u=u, base=base: e.ds_read("ds_read_b128", V(CI + 4 * u, 4), base, slot * 64 + 16 * u)))
    F.append((-2, None))
    def conv():
        for q in range(5):
            for o in range(2):
                d = V(CO + 4 * o, 4)
                e.m4(d, V(CW + 2 * q, 2), V(CI + 2 * (o + q), 2), d if q else "0")
    F.append((90, conv))
    for j in range(8):
        F.append((4, lambda j=j: e.valu(f"v_mul_f32 {V(TT+j)}, {LOG2E_NEG}, {V(CO+j)}", V(TT + j), V(CO + j))))
    for j in range(8):
        F.append((9, lambda j=j: e.trans(f"v_exp_f32 {V(TT+j)}, {V(TT+j)}", V(TT + j), V(TT + j))))
    for j in range(8):
        F.append((4, lambda j=j: e.valu(f"v_add_f32 {V(TT+j)}, 1.0, {V(TT+j)}", V(TT + j), V(TT + j))))
    for j in range(8):
        F.append((9, lambda j=j: e.trans(f"v_rcp_f32 {V(TT+j)}, {V(TT+j)}", V(TT + j), V(TT + j))))
    for j in range(8):
        F.append((4, lambda j=j: e.valu(f"v_mul_f32 {V(TT+j)}, {V(CO+j)}, {V(TT+j)}", V(TT + j), [V(CO + j), V(TT + j)])))
    for j in range(4):
        F.append((4, lambda j=j: e.valu(f"v_cvt_pk_bf16_f32 {V(UU+j)}, {V(TT+2*j)}, {V(TT+2*j+1)}", V(UU + j), [V(TT + 2 * j), V(TT + 2 * j + 1)])))
    F.append((1, lambda: e.ds_write("ds_write_b128", vHR, V(UU, 4), slot * 64)))
    for ee in range(2):
        F.append((1, lambda ee=ee: e.ds_read("ds_read_b64_tr_b16", V(SF + 2 * ee, 2), vSR, ee * 4 * HS + slot * 64)))
    F.append((-2, None))
    def store():
        e.salu(f"s_add_u32 {sT2}, {sSB}, {r*32768}", sT2, sSB)
        st[("S", r)] = e.vstore("buffer_store_dwordx4", V(SF, 4), vSO, sWS, sT2, flags=" sc1")
    F.append((9, store))
    return F

def flag_store(idx_key, soff_reg, add):
    e.wait_vm(st[idx_key])
    if add:
        e.salu(f"s_add_u32 {sT2}, {soff_reg}, {add}", sT2, soff_reg)
        soff_reg = sT2
    e.vstore("buffer_store_dwordx2", f"v[{EP0[1:]}:{EP1[1:]}]", vFL, sWS, soff_reg, flags=" sc1")

class Ring:
    def __init__(self):
        self.reads = []
        self.avail = 0
        self.issued = 0
        self.used = 0
    def fill(self):
        while self.issued < min(self.avail, self.used + len(AF)):
            self.reads[self.issued](AF[self.issued % len(AF)])
            self.issued += 1
    def take(self):
        assert self.used < self.issued, "fragment not issued"
        r = AF[self.used % len(AF)]
        self.used += 1
        return r

ring = Ring()

def run_segment(mf, F, lead=0):
    n = len(mf)
    ngap = sum(-c for c, _ in F if c < 0)
    tot = sum(c for c, _ in F if c > 0)
    per = tot / max(1, n - ngap - 1)
    fi = 0; hold = 0; credit = lead * per
    for i in range(n):
        ring.fill()
        fr = ring.take()
        mf[i](fr)
        ring.fill()
        if n == 16 and i in (0, 5, 10, 15): mstamp(f" m{i}")
        if hold > 0:
            hold -= 1
            if hold > 0:
                continue
        credit += per
        while fi < len(F) and credit > 0:
            c, f = F[fi]; fi += 1
            if c < 0:
                hold = -c; credit = min(credit, 0); break
            f(); credit -= c
    while fi < len(F):
        if F[fi][0] >= 0: F[fi][1]()
        fi += 1

def run_fillers(F):
    for c, f in F:
        if c >= 0: f()

def g1_mfma(f):
    def m(fr):
        d = V(E, 16) if f == 31 else V(ACC, 16)
        e.m32(d, V(fr, 4), A(4 * f, 4), V(ACC, 16) if f else "0")
    return m

def g2_mfma(f):
    def m(fr):
        d = V(E, 16) if f == 31 else V(ACC, 16)
        e.m32(d, A(4 * f, 4), V(fr, 4), V(ACC, 16) if f else "0")
    return m

if "fbench" in XP:
    e.wait_all(); e.barrier()
    stamp("f0")
    for it in range(4): run_fillers(glu_fillers(1))
    e.wait_all(); e.barrier()
    stamp("glu4")
    for it in range(4): run_fillers(out_fillers(2))
    e.wait_all(); e.barrier()
    stamp("out4")
    for it in range(4): run_fillers([f for f in out_fillers(2) if f[0] in (4, 9)][:-1])
    e.wait_all(); e.barrier()
    stamp("silu4")
    for it in range(4): run_fillers([f for f in out_fillers(2) if f[0] in (90,)])
    e.wait_all(); e.barrier()
    stamp("conv4")
    e.raw("s_branch L_end")
if "seg" in XP:
    e.wait_all(); e.barrier()
    for rr in range(16, 48): e.valu(f"v_mov_b32 v{rr}, 0.5", f"v{rr}", [])
    stamp("s0")
    def mrun():
        for j in range(4):
            for s_ in range(4):
                ring.reads.append(lambda dst, p=j, s_=s_: x_read(dst, p, s_))
        ring.avail = len(ring.reads)
        run_segment([g1_mfma(1 + i) for i in range(16)], [])
    novm = lambda F: [f for f in F if f[1] is None or f[1].__name__ != "store"]
    def pair(fa, fb, nm, pa=0, pb=0):
        e.begin_role("A"); e.raw(f"s_setprio {pa}"); fa(); e.end_role()
        e.begin_role("B"); e.raw(f"s_setprio {pb}"); fb(); e.end_role()
        stamp(nm)
        e.barrier()
        stamp("-")
    glu = lambda: run_fillers(glu_fillers(1))
    out = lambda: run_fillers(novm(out_fillers(2)))
    nop = lambda: None
    pair(nop, nop, "nop|nop")
    pair(mrun, nop, "M|nop")
    pair(glu, nop, "glu|nop")
    pair(out, nop, "out|nop")
    pair(mrun, glu, "M0|glu0")
    pair(mrun, glu, "M0|glu1", 0, 1)
    pair(glu, mrun, "glu0|M0")
    pair(glu, mrun, "glu1|M0", 1, 0)
    pair(mrun, out, "M0|out1", 0, 1)
    pair(out, mrun, "out1|M0", 1, 0)
    pair(mrun, mrun, "M|M")
    pair(glu, glu, "glu|glu")
    e.raw("s_branch L_end")
XQ = {1: [8, 9, 10, 11, 12, 13, 14, 15], 2: [0, 1, 2, 3, 4, 5, 6, 7], 3: [8, 9, 10, 11, 12, 13, 14, 15]}
def dma_dw():
    e.salu(f"s_add_u32 m0, {sW1024}, {16*PAGE}", "m0", sW1024)
    st["dw"] = e.dma(vDD, sDW, "0")
after = {
    0: lambda: dma_chunk(4),
    1: lambda: dma_chunk(5),
    2: lambda: dma_chunk(6),
    3: lambda: dma_chunk(7),
    4: lambda: (dma_x(8, 0, vDX), dma_x(9, 1, vDX), dma_x(10, 2, vDX), dma_x(11, 3, vDX)),
    5: lambda: (dma_x(12, 4, vDX), dma_x(13, 5, vDX), dma_x(14, 6, vDX), dma_x(15, 7, vDX),
                e.valu(f"v_add_u32 {vDX}, 0x8000, {vDX}", vDX, vDX)),
    6: lambda: (dma_dw(), dma_x(0, 0, vDX), dma_x(1, 1, vDX), dma_x(2, 2, vDX), dma_x(3, 3, vDX)),
    7: lambda: (e.vload("buffer_load_dword", EP0, vFL, sDBG, "0", flags=" sc1")),
}
for j in range(8):
    wp, xp = ST0[j]
    barrier_with([wp, wp + 1, xp], f"c{j}" if j in (0, 4) else None)
    for s_ in range(4):
        ring.reads.append(lambda dst, xp=xp, s_=s_: x_read(dst, xp, s_))
    ring.avail = len(ring.reads)
    for s_ in range(4):
        w_tr(vWT, 4 * j + s_, wp, s_)
        ring.fill()
    after[j]()
    run_segment([g1_mfma(4 * j + s_) for s_ in range(4)], [])

base_idx = len(ring.reads)
for s in (1, 2, 3):
    for j in range(8):
        for s_ in range(4):
            ring.reads.append(lambda dst, p=XQ[s][j], s_=s_: x_read(dst, p, s_))

def merge(F1, F2):
    if not F1: return F2
    out = []; n1 = len(F1); n2 = len(F2); k = 0
    for i, f in enumerate(F1):
        while k < n2 and k * n1 <= i * n2:
            out.append(F2[k]); k += 1
        out.append(f)
    return out + F2[k:]

def dma_group(k):
    F = []
    if "nodma" in XP:
        return F
    if k == 0:
        for j in range(4, 8):
            F.append((9, lambda j=j: dma_x(j, j, vDX)))
        F.append((4, lambda: e.valu(f"v_add_u32 {vDX}, 0x8000, {vDX}", vDX, vDX)))
    elif k == 1:
        for j in range(4):
            F.append((9, lambda j=j: dma_x(8 + j, j, vDX)))
    elif k == 2:
        for j in range(4, 8):
            F.append((9, lambda j=j: dma_x(8 + j, j, vDX)))
    else:
        for j in (2 * (k - 3), 2 * (k - 3) + 1):
            pg = 2 * j if k < 6 else 2 * j - 8
            F.append((9, lambda j=j, pg=pg: dma_w(pg, j, 2, 0)))
            F.append((9, lambda j=j, pg=pg: dma_w(pg, j, 2, 1)))
    return F

def role_bar(role, pages, name, drain=False):
    e.begin_role(role)
    idx = max([page_dma[p] for p in pages], default=-1)
    e.wait_vm(idx)
    if drain:
        e.raw("s_waitcnt lgkmcnt(0)", kind="wait")
    e.barrier()
    e.end_role()
    if name[0] == "a" or "allb" in XP: stamp(name)

def wl(a, b):
    return [(1, lambda f=f: w_tr(vWU, f, 2 * (f // 4) if f < 24 else 2 * (f // 4) - 8, f % 4)) for f in range(a, b)]

def epoch_get():
    ok = e.newlabel("L_eok"); lp = e.newlabel("L_ep")
    e.valu(f"v_cmp_ne_u32 {sCMP}, 0, {EP0}", sCMP, EP0)
    e.nop(2)
    e.salu("s_and_b32 s84, s84, 1", "s84", "s84")
    e.raw(f"s_cbranch_scc1 {ok}", kind="branch")
    e.salu(f"s_mov_b32 {sCNT}, 0", sCNT)
    e.label(lp)
    e.raw("s_sleep 1")
    e.raw(f"buffer_load_dword {EP0}, {vFL}, {sDBG}, 0 offen sc1")
    e.raw("s_waitcnt vmcnt(0)", kind="wait")
    e.valu(f"v_cmp_ne_u32 {sCMP}, 0, {EP0}", sCMP, EP0)
    e.nop(2)
    e.salu("s_and_b32 s84, s84, 1", "s84", "s84")
    e.raw(f"s_cbranch_scc1 {ok}", kind="branch")
    e.salu(f"s_add_u32 {sCNT}, {sCNT}, 1", sCNT, sCNT)
    e.salu(f"s_cmp_lt_u32 {sCNT}, {SPIN_LIMIT}", "scc", sCNT)
    e.raw(f"s_cbranch_scc1 {lp}", kind="branch")
    e.label(ok)
    e.nop(2)
    e.rfl("s70", EP0)
    e.valu(f"v_mov_b32 {EP0}, s70", EP0, "s70")
    e.valu(f"v_not_b32 {EP1}, s70", EP1, "s70")

Q = [[0, 1, 2, 3], [4, 5, 6, 7], [8, 9, 10, 11], [12, 13, 14, 15]]
MQ = [2, 3, 0, 1, 2, 3]
def Mblock(k, F=(), late=()):
    e.comment(f"---- M{k}")
    e.raw("s_setprio 0")
    ring.avail = base_idx + 16 * (k + 1)
    run_segment([g1_mfma(16 * (k % 2) + i) for i in range(13)], [(-2, None)] + list(F))
    run_fillers(list(late))
    run_segment([g1_mfma(16 * (k % 2) + i) for i in range(13, 16)], [])
    e.raw("s_setprio 1")
def out_parts(r):
    F = out_fillers(r)
    return F[:3], F[3:-1], F[-1:]
def prefetch(k):
    ring.avail = base_idx + 16 * (k + 1)
    ring.fill()

barrier_with(Q[2], "k0")
e.raw("s_setprio 1")
e.begin_role("B"); run_fillers(glu_fillers(0, first="B")); e.end_role()
Mblock(0, dma_group(0))
role_bar("B", Q[3], "b1")
e.begin_role("A"); run_fillers(glu_fillers(0, first="A")); e.end_role()
F = [(1, lambda: e.wait_vm(st["dw"]))]
for n in range(20):
    F.append((1, lambda n=n: e.ds_read("ds_read_u16", V(CI + n), vDR, n * 32)))
F += [(9, epoch_get)]
for n in range(10):
    F.append((4, lambda n=n: e.valu(f"v_lshl_or_b32 {V(CW+n)}, {V(CI+2*n+1)}, 16, {V(CI+2*n)}", V(CW + n), [V(CI + 2 * n + 1), V(CI + 2 * n)])))
run_fillers(F)
e.salu(f"s_lshl_b32 {sT3}, {sKC[0]}, 9", sT3, sKC[0])
e.vload("buffer_load_dwordx4", V(CO, 4), vDW2, sW2, sT3)
e.salu(f"s_add_u32 {sT3}, {sT3}, 4096", sT3, sT3)
e.vload("buffer_load_dwordx4", V(CO + 4, 4), vDW2, sW2, sT3)
role_bar("A", Q[3] + Q[0], "a1")
Mblock(1, dma_group(1))
role_bar("B", Q[0], "b2")
run_fillers(glu_fillers(1))
prefetch(2)
role_bar("A", Q[1], "a2")
def halo_flag():
    e.begin_role("A"); flag_store("halo_store", sHF, 0); e.end_role()
pre, main, post0 = out_parts(0)
Mblock(2, [(9, halo_flag)] + dma_group(2), pre)
role_bar("B", Q[1], "b3")
run_fillers(main)
prefetch(3)
role_bar("A", Q[2], "a3")
def halo_poll():
    e.begin_role("B"); st["hp"] = poll_issue(vFL, sNF); e.end_role()
Mblock(3, post0 + dma_group(3) + [(9, halo_poll)])
role_bar("B", Q[2], "b4")
run_fillers(glu_fillers(2))
e.begin_role("B")
poll_check(1, st["hp"], maskreg=sNEEDH)
e.valu(f"v_lshlrev_b32 v{TT}, 3, {vL}", V(TT), vL)
e.vload("buffer_load_dwordx2", V(POL0i, 2), V(TT), sWS, sND, flags=" sc1")
e.end_role()
prefetch(4)
role_bar("A", Q[3], "a4")
pre, main, post1 = out_parts(1)
Mblock(4, [(9, lambda: flag_store(("S", 0), sFB, 0))] + dma_group(4), pre)
role_bar("B", Q[3] + Q[0], "b5")
e.ds_write("ds_write_b64", vHP2, V(POL0i, 2), 0)
e.valu(f"v_add_u32 {vWU[1]}, 0x10000, {vWU[0]}", vWU[1], vWU[0])
run_fillers(main)
prefetch(5)
role_bar("A", Q[0], "a5")
Mblock(5, post1 + merge(wl(0, 8), dma_group(5)))
role_bar("B", Q[1], "b6", drain=True)

TQ = [0, 3, 2, 1]
def dma_T(i):
    e.salu(f"s_add_u32 m0, {sW4096}, {TQ[i]*4*PAGE}", "m0", sW4096)
    e.salu(f"s_add_u32 {sT3}, {sLB}, {i*32768}", sT3, sLB)
    for q in range(4):
        idx = e.dma(vSO, sWS, sT3, off=q * 1024, flags=" sc1")
    for p in Q[TQ[i]]:
        page_dma[p] = idx
def poll_tile(i):
    e.salu(f"s_add_u32 {sT1}, {sPB}, {i*1024}", sT1, sPB)
    return poll_issue(vPF, sT1)

e.begin_role("B"); e.raw("s_setprio 2"); e.end_role()
G3 = glu_fillers(3)
run_fillers(G3[:30])
flag_store(("S", 1), sFB, 1024)
tp = poll_tile(0)
run_fillers(G3[30:])
role_bar("A", Q[1], "a6", drain=True)
poll_check(0xF, tp)
dma_T(0)
O2 = merge(out_fillers(2), wl(8, 16))
run_fillers(O2[:40])
tp = poll_tile(1)
run_fillers(O2[40:])
stamp("o2")
O3 = out_fillers(3)
run_fillers(O3[:5])
poll_check(0xF, tp)
dma_T(1)
run_fillers(O3[5:30])
flag_store(("S", 2), sFB, 2048)
run_fillers(O3[30:])
e.wait_all(vm=False, ds=True)
barrier_with(Q[0] + Q[3] + Q[2], "B2")
e.raw("s_setprio 0")
for f in range(32):
    ring.reads.append(lambda dst, f=f: e.ds_read("ds_read_b128", V(dst, 4), vSA, f * 1024))
ring.avail = len(ring.reads)
run_segment([g2_mfma(f) for f in range(1)], [])
flag_store(("S", 3), sFB, 3072)
run_segment([g2_mfma(f) for f in range(1, 6)], merge(wl(16, 24), dma_group(6)), lead=2)
run_segment([g2_mfma(f) for f in range(6, 14)], [])
tp = poll_tile(2)
run_segment([g2_mfma(f) for f in range(14, 16)], [])
e.wait_ds(max(e.pend_ds.get(f"a{i}", -1) for i in range(64, 96)))
barrier_with(Q[1], "B3")
run_segment([g2_mfma(f) for f in range(16, 20)], wl(24, 32), lead=2)
poll_check(0xF, tp)
dma_T(2)
tp = poll_tile(3)
run_segment([g2_mfma(f) for f in range(20, 24)], [])
e.wait_ds(max(e.pend_ds.get(f"a{i}", -1) for i in range(96, 128)))
barrier_with([], "B3b")
poll_check(0xF, tp)
dma_T(3)
stamp('p3b')
run_segment([g2_mfma(f) for f in range(24, 32)], [])

def out_epilogue(second):
    for j in range(8):
        e.valu(f"v_cvt_pk_bf16_f32 {V(TT+j)}, {V(E+2*j)}, {V(E+2*j+1)}", V(TT + j), [V(E + 2 * j), V(E + 2 * j + 1)])
    e.vstore("buffer_store_dwordx4", V(TT, 4), vOUT, sOUT, "0")
    e.vstore("buffer_store_dwordx4", V(TT + 4, 4), vOUT, sOUT, "0", off=16)

e.valu(f"v_xor_b32 {vSA}, 0x10000, {vSA}", vSA, vSA)
out_epilogue(False)
e.valu(f"v_add_u32 {vOUT}, 0x10000, {vOUT}", vOUT, vOUT)
barrier_with(Q[2] + Q[1], "B4")
for f in range(32):
    ring.reads.append(lambda dst, f=f: e.ds_read("ds_read_b128", V(dst, 4), vSA, f * 1024))
ring.avail = len(ring.reads)
run_segment([g2_mfma(f) for f in range(32)], [])
stamp('g2end')
out_epilogue(True)
if HDIAG:
    e.wait_all()
    stamp('end')
if DIAG:
    e.wait_all()
    stamp('end')
    e.raw(f"s_memrealtime {sST[0]}", kind="smem")
    e.raw("s_waitcnt lgkmcnt(0)", kind="wait")
    e.valu("v_mov_b32 v110, s88", "v110", [])
    e.vstore("buffer_store_dword", "v110", vFL, sWS, sDG, off=8)
e.label("L_end")

header = open(os.path.join(os.path.dirname(__file__), "header.txt")).read()
src = header + f"""; @launch grid=(256,1,1) block=(512,1,1) lds={LDS_BYTES}
.amdgcn_target "amdgcn-amd-amdhsa--gfx950"
.text
.globl {NAME}_kernel
.p2align 8
.type {NAME}_kernel,@function
{NAME}_kernel:
{e.text()}    s_endpgm
.section .rodata,"a"
.p2align 6
.amdhsa_kernel {NAME}_kernel
  .amdhsa_next_free_vgpr 256
  .amdhsa_next_free_sgpr 102
  .amdhsa_accum_offset 128
  .amdhsa_group_segment_fixed_size 0
  .amdhsa_kernarg_size 56
  .amdhsa_user_sgpr_count 2
  .amdhsa_user_sgpr_kernarg_segment_ptr 1
  .amdhsa_system_sgpr_workgroup_id_x 1
.end_amdhsa_kernel
"""
out = OUTP[0] if OUTP else f"cdna_kernels/{NAME}.s"
if DIAG:
    src += "; STAMPS " + " ".join(STAMPS) + "\n"
open(out, "w").write(src)
print("wrote", out, "instr counts", e.count, file=sys.stderr)
```

```python
import sys, os
sys.path.insert(0, os.path.dirname(__file__))
from em import Em, R

NAME = "standalone__conformer_conv_module__speech"
DIAG = "--diag" in sys.argv
XP = dict((a[4:].split("=") + ["1"])[:2] for a in sys.argv if a.startswith("--x-"))
OUTP = [a for a in sys.argv[1:] if not a.startswith("--")]
GSPLIT = int(XP.get("gs", 99))
OSPLIT = int(XP.get("os", 99))

PAGE = 8192
HBASE = 17 * PAGE
HS = 160
HW = 16 * HS
DUMMY = HBASE + 8 * HW
LDS_BYTES = 163840
ST0 = [(4, 6), (8, 7), (10, 12), (14, 13), (0, 2), (16, 3), (18, 6), (4, 7)]
Q = [[0, 1, 2, 3], [4, 5, 6, 7], [8, 9, 10, 11], [12, 13, 14, 15], [16, 17, 18, 19]]
WS_HALO = 8 << 20
WS_SFLAG = 9 << 20
WS_HFLAG = 10 << 20
WS_DIAG = 11 << 20
WS_BYTES = 16 << 20
OOB = 0x80000000
SPIN_LIMIT = 1 << 18

sX, sW1, sW2, sWS, sOUT, sDW, sDBG = "s[20:23]", "s[24:27]", "s[28:31]", "s[32:35]", "s[36:39]", "s[40:43]", "s[44:47]"
sW, sCG, sP, sM, sG, sMM, sB, sC0 = "s48", "s49", "s50", "s51", "s52", "s53", "s54", "s55"
sKC = [f"s{56+j}" for j in range(8)]
sW1024, sW2048, sT0, sT1, sT2, sT3 = "s64", "s65", "s66", "s67", "s68", "s69"
sD = "s18"
sSA2 = "s19"
sSB, sFB, sHD, sHF, sND, sNF, sLB, sPB, sNEEDH, sCNT, sW4096 = [f"s{72+i}" for i in range(11)]
LOG2E = "s83"
sCMP, sCM2 = "s[84:85]", "s[100:101]"
sDG, sGP, sPT, sFT = "s86", "s87", "s88", "s89"
sBO = "s3"
vL = "v1"
vXA = [f"v{2+i}" for i in range(4)]
vXB = [f"v{6+i}" for i in range(4)]
vDX, vDX0, vDW1, vDW2 = "v10", "v11", "v12", "v13"
vHW, vHP1, vHP2 = "v14", "v15", "v120"
ACC, E = 16, 32
AF = [48 + 4 * i for i in range(5)]
EP0, EP1, POL0, POL1 = "v68", "v69", "v70", "v71"
CW = 72
vFL, vPF = "v82", "v83"
CI, CO, TT, UU, SF = 84, 96, 104, 112, 116
vHR, vHR1, vHR2, vSR, vSO, vSA, vOUT = "v121", "v122", "v123", "v124", "v125", "v126", "v127"
vWT = ["v84", "v85", "v86"]
vWU = ["v118", "v11"]
vDD, vDR = "v116", "v117"

e = Em()
def V(i, n=1): return R("v", i, n)
def A(i, n=1): return R("a", i, n)
def va(t, w, r=()): e.valu(t, w, r)
def sa(t, w=(), r=()): e.salu(t, w, r)

STAMPS = []
def stamp(name):
    if not DIAG:
        return
    i = len(STAMPS)
    assert i < 60
    if i >= 1:
        r = 92 + 2 * ((i - 1) % 2)
        e.raw(f"v_writelane_b32 v119, s{r}, {i - 1 + 3}", kind="valu")
    r = 92 + 2 * (i % 2)
    e.raw(f"s_memtime s[{r}:{r+1}]", kind="smem")
    STAMPS.append(str(name))

sa("s_cmp_ge_u32 s2, 256")
e.raw("s_cbranch_scc1 L_end", kind="branch")
e.raw("s_load_dwordx8 s[4:11], s[0:1], 0", kind="smem")
e.raw("s_load_dwordx4 s[12:15], s[0:1], 32", kind="smem")
e.raw("s_load_dwordx2 s[16:17], s[0:1], 48", kind="smem")
e.raw("s_memrealtime s[70:71]", kind="smem")
if DIAG:
    e.raw("s_memtime s[90:91]", kind="smem")
va("v_lshrrev_b32 v104, 6, v0", "v104", "v0")
va(f"v_and_b32 {vL}, 63, v0", vL, "v0")
e.rfl(sW, "v104")
sa(f"s_and_b32 {sT0}, s2, 7", sT0)
sa(f"s_lshr_b32 {sT1}, s2, 3", sT1)
sa(f"s_and_b32 {sG}, {sT1}, 7", sG, sT1)
sa(f"s_lshr_b32 {sT1}, {sT1}, 3", sT1, sT1)
sa(f"s_lshl_b32 {sM}, {sT0}, 2", sM, sT0)
sa(f"s_add_u32 {sM}, {sM}, {sT1}", sM, [sM, sT1])
sa(f"s_and_b32 {sMM}, {sM}, 15", sMM, sM)
sa(f"s_lshr_b32 {sB}, {sM}, 4", sB, sM)
sa(f"s_lshl_b32 {sT1}, {sT1}, 1", sT1, sT1)
sa(f"s_add_u32 {sC0}, {sG}, {sT1}", sC0, [sG, sT1])
sa(f"s_and_b32 {sCG}, {sW}, 3", sCG, sW)
sa(f"s_lshr_b32 {sP}, {sW}, 2", sP, sW)
sa(f"s_lshl_b32 {sW1024}, {sW}, 10", sW1024, sW)
sa(f"s_lshl_b32 {sW2048}, {sW}, 11", sW2048, sW)
sa(f"s_mul_i32 {sBO}, {sB}, 4096000", sBO, sB)
def kc(j):
    sa(f"s_add_u32 {sKC[j]}, {sC0}, {j}", sKC[j], sC0)
    sa(f"s_and_b32 {sKC[j]}, {sKC[j]}, 7", sKC[j], sKC[j])
    sa(f"s_lshl_b32 {sKC[j]}, {sKC[j]}, 7", sKC[j], sKC[j])
kc(0)
va(f"v_lshrrev_b32 v104, 4, {vL}", "v104", vL)
va(f"v_and_b32 v105, 7, {vL}", "v105", vL)
va("v_lshlrev_b32 v106, 1, v104", "v106", "v104")
va("v_xor_b32 v106, v106, v105", "v106", ["v106", "v105"])
va("v_lshlrev_b32 v106, 4, v106", "v106", "v106")
va(f"v_bfe_u32 v107, {vL}, 3, 1", "v107", vL)
va("v_lshl_add_u32 v106, v107, 10, v106", "v106", ["v107", "v106"])
va("v_lshl_add_u32 v106, v104, 11, v106", "v106", ["v104", "v106"])
sa(f"s_lshl_b32 {sT0}, {sW}, 14", sT0, sW)
sa(f"s_lshl_b32 {sT1}, {sG}, 7", sT1, sG)
sa(f"s_add_u32 {sT0}, {sT0}, {sT1}", sT0, [sT0, sT1])
va(f"v_add_u32 {vDW1}, {sT0}, v106", vDW1, [sT0, "v106"])
va(f"v_lshrrev_b32 v104, 3, {vL}", "v104", vL)
sa(f"s_lshl_b32 {sT0}, {sCG}, 3", sT0, sCG)
va(f"v_add_u32 v104, {sT0}, v104", "v104", [sT0, "v104"])
va("v_bfe_u32 v106, v104, 1, 3", "v106", "v104")
va("v_xor_b32 v106, v106, v105", "v106", ["v106", "v105"])
sa(f"s_lshl_b32 {sT0}, {sMM}, 8", sT0, sMM)
sa(f"s_lshl_b32 {sT1}, {sP}, 7", sT1, sP)
sa(f"s_add_u32 {sT0}, {sT0}, {sT1}", sT0, [sT0, sT1])
sa(f"s_sub_u32 {sT0}, {sT0}, 7", sT0, sT0)
va(f"v_add_u32 v104, {sT0}, v104", "v104", [sT0, "v104"])
va("v_lshlrev_b32 v107, 10, v104", "v107", "v104")
va("v_lshl_add_u32 v107, v106, 4, v107", "v107", ["v106", "v107"])
va("v_cmp_gt_i32 vcc, 0, v104", "vcc", "v104")
va(f"v_mov_b32 v106, {hex(OOB)}", "v106")
va(f"v_cndmask_b32 {vDX0}, v107, v106, vcc", vDX0, ["v107", "v106", "vcc"])
va(f"v_add_u32 {vDX}, 0x8000, v107", vDX, "v107")
sa("s_mov_b32 s26, 1048576", "s26"); sa("s_mov_b32 s27, 0x00020000", "s27")
sa("s_mov_b32 s22, 4096000", "s22"); sa("s_mov_b32 s23, 0x00020000", "s23")
e.raw("s_waitcnt lgkmcnt(0)", kind="wait")
sa("s_mov_b32 s24, s6", "s24"); sa("s_mov_b32 s25, s7", "s25")
sa(f"s_add_u32 s20, s4, {sBO}", "s20", sBO); sa("s_addc_u32 s21, s5, 0", "s21")

page_dma = {}
def dma_x(page, j, voff):
    sa(f"s_add_u32 m0, {sW1024}, {page*PAGE}", "m0", sW1024)
    page_dma[page] = e.dma(voff, sX, sKC[j])
def dma_w(page, j, which, part=None):
    sh, srd, voff, row4 = (10, sW1, vDW1, 8192) if which == 1 else (9, sW2, vDW2, 4096)
    sa(f"s_add_u32 m0, {sW2048}, {page*PAGE}", "m0", sW2048)
    sa(f"s_lshl_b32 {sD}, {sKC[j]}, {sh}", sD, sKC[j])
    if part in (None, 0):
        e.dma(voff, srd, sD)
    if part in (None, 1):
        sa(f"s_add_u32 {sD}, {sD}, {row4-1024}", sD, sD)
        idx = e.dma(voff, srd, sD, off=1024)
        page_dma[page] = idx; page_dma[page + 1] = idx
def dma_chunk(j):
    dma_w(ST0[j][0], j, 1)
    dma_x(ST0[j][1], j, vDX0)

dma_chunk(0)
kc(1); kc(2); kc(3)
va(f"v_and_b32 v105, 3, {vL}", "v105", vL)
va(f"v_bfe_u32 v107, {vL}, 4, 1", "v107", vL)
va(f"v_lshrrev_b32 v108, 5, {vL}", "v108", vL)
va(f"v_bfe_u32 v109, {vL}, 2, 2", "v109", vL)
va("v_lshl_add_u32 v106, v108, 3, v109", "v106", ["v108", "v109"])
va("v_lshlrev_b32 v106, 8, v106", "v106", "v106")
va("v_lshrrev_b32 v110, 1, v105", "v110", "v105")
sa(f"s_lshl_b32 {sT1}, {sCG}, 1", sT1, sCG)
va(f"v_add_u32 v110, {sT1}, v110", "v110", [sT1, "v110"])
va("v_lshlrev_b32 v111, 1, v109", "v111", "v109")
va("v_xor_b32 v110, v110, v111", "v110", ["v110", "v111"])
va("v_lshl_add_u32 v110, v110, 4, v106", "v110", ["v110", "v106"])
va("v_lshl_add_u32 v110, v107, 7, v110", "v110", ["v107", "v110"])
va("v_and_b32 v111, 1, v105", "v111", "v105")
va(f"v_lshl_add_u32 {vWT[0]}, v111, 3, v110", vWT[0], ["v111", "v110"])
e.barrier()
dma_chunk(1)
va(f"v_add_u32 {vWT[1]}, 0x10000, {vWT[0]}", vWT[1], vWT[0])
va(f"v_add_u32 {vWT[2]}, 0x20000, {vWT[0]}", vWT[2], vWT[0])
va(f"v_xor_b32 v110, {sCG}, v109", "v110", [sCG, "v109"])
va("v_lshl_add_u32 v110, v110, 6, v106", "v110", ["v110", "v106"])
va("v_lshl_add_u32 v110, v111, 5, v110", "v110", ["v111", "v110"])
va("v_lshl_add_u32 v110, v107, 4, v110", "v110", ["v107", "v110"])
va("v_lshrrev_b32 v111, 1, v105", "v111", "v105")
va(f"v_lshl_add_u32 v118, v111, 3, v110", "v118", ["v111", "v110"])
va(f"v_and_b32 v106, 31, {vL}", "v106", vL)
va("v_bfe_u32 v110, v106, 1, 3", "v110", "v106")
va("v_xor_b32 v110, v110, v108", "v110", ["v110", "v108"])
sa(f"s_lshl_b32 {sT1}, {sP}, 12", sT1, sP)
va(f"v_lshl_add_u32 v106, v106, 7, {sT1}", "v106", ["v106", sT1])
for s_ in range(4):
    va(f"v_xor_b32 v111, {2*s_}, v110", "v111", "v110")
    va(f"v_lshl_add_u32 {vXA[s_]}, v111, 4, v106", vXA[s_], ["v111", "v106"])
    va(f"v_add_u32 {vXB[s_]}, 0x10000, {vXA[s_]}", vXB[s_], vXA[s_])
e.barrier()
dma_chunk(2)
kc(4); kc(5); kc(6); kc(7)
va(f"v_lshrrev_b32 v104, 2, {vL}", "v104", vL)
sa(f"s_lshl_b32 {sT0}, {sG}, 7", sT0, sG)
sa(f"s_lshl_b32 {sT1}, {sCG}, 5", sT1, sCG)
sa(f"s_add_u32 {sT0}, {sT0}, {sT1}", sT0, [sT0, sT1])
sa(f"s_sub_u32 {sT0}, {sT0}, 3072", sT0, sT0)
va(f"v_lshrrev_b32 v106, 1, {vL}", "v106", vL)
va(f"v_lshl_add_u32 v106, v106, 10, {sT0}", "v106", ["v106", sT0])
va(f"v_and_b32 v110, 1, {vL}", "v110", vL)
va(f"v_lshl_add_u32 {vDD}, v110, 4, v106", vDD, ["v110", "v106"])
sa(f"s_add_u32 {sT1}, {sW1024}, {18*PAGE + 96}", sT1, sW1024)
va(f"v_lshl_add_u32 v106, v104, 1, {sT1}", "v106", ["v104", sT1])
va("v_lshlrev_b32 v110, 5, v105", "v110", "v105")
va(f"v_sub_u32 {vDR}, v106, v110", vDR, ["v106", "v110"])
sa("s_mov_b32 s40, s8", "s40"); sa("s_mov_b32 s41, s9", "s41")
sa("s_mov_b32 s42, 15360", "s42"); sa("s_mov_b32 s43, 0x00020000", "s43")
sa(f"s_add_u32 m0, {sW1024}, {18*PAGE}", "m0", sW1024)
st = {}
st["dw"] = e.dma(vDD, sDW, "0")

class Rec:
    def __init__(self): self.ops = []
REC = None
_va, _sa = va, sa
def va(t, w, r=()):
    if REC is not None: REC.ops.append(lambda: _va(t, w, r))
    else: _va(t, w, r)
def sa(t, w=(), r=()):
    if REC is not None: REC.ops.append(lambda: _sa(t, w, r))
    else: _sa(t, w, r)
def later(f):
    if REC is not None: REC.ops.append(f)
    else: f()
def p2_a():
    sa("s_mov_b32 s28, s10", "s28"); sa("s_mov_b32 s29, s11", "s29")
    sa("s_mov_b32 s30, 524288", "s30"); sa("s_mov_b32 s31, 0x00020000", "s31")
    sa("s_mov_b32 s32, s16", "s32"); sa("s_mov_b32 s33, s17", "s33")
    sa(f"s_mov_b32 s34, {WS_BYTES}", "s34"); sa("s_mov_b32 s35, 0x00020000", "s35")
    sa(f"s_add_u32 s36, s12, {sBO}", "s36", sBO); sa("s_addc_u32 s37, s13, 0", "s37")
    sa("s_mov_b32 s38, 4096000", "s38"); sa("s_mov_b32 s39, 0x00020000", "s39")
    sa("s_mov_b32 s44, s14", "s44"); sa("s_mov_b32 s45, s15", "s45")
    sa("s_mov_b32 s46, 256", "s46"); sa("s_mov_b32 s47, 0x00020000", "s47")
    va(f"v_mov_b32 v106, {hex(OOB)}", "v106")
    va(f"v_cmp_eq_u32 vcc, 0, {vL}", "vcc", vL)
    va(f"v_cndmask_b32 {vFL}, v106, {vL}, vcc", vFL, ["v106", vL, "vcc"])
    sa("s_mov_b32 s96, s70", "s96", "s70")
    sa("s_or_b32 s70, s70, 1", "s70", "s70")
    sa("s_lshl_b32 s71, s2, 10", "s71")
    va("v_add_u32 v104, s71, v0", "v104", ["s71", "v0"])
    va("v_cmp_eq_u32 vcc, 0, v104", "vcc", "v104")
    va("v_cndmask_b32 v104, v106, v104, vcc", "v104", ["v106", "v104", "vcc"])
    va("v_mov_b32 v110, s70", "v110", "s70")
    later(lambda: e.vstore("buffer_store_dword", "v110", "v104", sDBG, "0", flags=" sc1"))
    sa(f"s_mov_b32 {LOG2E}, 0xbfb8aa3b", LOG2E)
    if DIAG:
        sa(f"s_lshl_b32 {sDG}, s2, 3", sDG)
        sa(f"s_add_u32 {sDG}, {sDG}, {sW}", sDG, [sDG, sW])
        sa(f"s_lshl_b32 {sDG}, {sDG}, 8", sDG, sDG)
        sa(f"s_add_u32 {sDG}, {sDG}, {WS_DIAG}", sDG, sDG)
        later(lambda: e.raw("v_writelane_b32 v119, s90, 0", kind="valu"))
        later(lambda: e.raw("v_writelane_b32 v119, s96, 1", kind="valu"))
def p2_b():
    va(f"v_lshrrev_b32 v104, 2, {vL}", "v104", vL)
    sa(f"s_mul_i32 {sT0}, {sW}, {HW}", sT0, sW)
    sa(f"s_add_u32 {sT0}, {sT0}, {HBASE}", sT0, sT0)
    va(f"v_mul_u32_u24 v106, {HS}, v104", "v106", "v104")
    va("v_lshl_add_u32 v106, v105, 4, v106", "v106", ["v105", "v106"])
    va(f"v_add_u32 {vHR}, {sT0}, v106", vHR, [sT0, "v106"])
    va(f"v_subrev_u32 v110, 128, {vHR}", "v110", vHR)
    va("v_cmp_eq_u32 vcc, 3, v105", "vcc", "v105")
    va(f"v_cndmask_b32 {vHR1}, {vHR}, v110, vcc", vHR1, [vHR, "v110", "vcc"])
    va("v_cmp_lt_u32 vcc, 1, v105", "vcc", "v105")
    va(f"v_cndmask_b32 {vHR2}, {vHR}, v110, vcc", vHR2, [vHR, "v110", "vcc"])
    va(f"v_and_b32 v106, 15, {vL}", "v106", vL)
    va(f"v_mul_u32_u24 v106, {HS}, v106", "v106", "v106")
    va("v_lshl_add_u32 v106, v107, 4, v106", "v106", ["v107", "v106"])
    va("v_lshl_add_u32 v106, v108, 3, v106", "v106", ["v108", "v106"])
    va(f"v_add_u32 {vHW}, {sT0}, v106", vHW, [sT0, "v106"])
    sa(f"s_sub_u32 {sT1}, {sT0}, {4*HW - 128}", sT1, sT0)
    va(f"v_add_u32 {vHP1}, {sT1}, v106", vHP1, [sT1, "v106"])
    va(f"v_add_u32 {vHP2}, 128, {vHW}", vHP2, vHW)
    va("v_lshl_add_u32 v106, v108, 3, v109", "v106", ["v108", "v109"])
    va(f"v_mul_u32_u24 v106, {HS}, v106", "v106", "v106")
    va("v_lshl_add_u32 v106, v107, 5, v106", "v106", ["v107", "v106"])
    va("v_lshl_add_u32 v106, v105, 3, v106", "v106", ["v105", "v106"])
    va(f"v_add_u32 {vSR}, {sT0}, v106", vSR, [sT0, "v106"])
def p2_c():
    va(f"v_lshrrev_b32 v106, 4, {vL}", "v106", vL)
    va("v_xor_b32 v110, v109, v106", "v110", ["v109", "v106"])
    va("v_lshl_add_u32 v110, v110, 2, v105", "v110", ["v110", "v105"])
    va("v_lshlrev_b32 v110, 4, v110", "v110", "v110")
    va("v_lshl_add_u32 v110, v106, 10, v110", "v110", ["v106", "v110"])
    sa(f"s_lshl_b32 {sT0}, {sW}, 13", sT0, sW)
    sa(f"s_lshr_b32 {sT1}, {sG}, 1", sT1, sG)
    sa(f"s_lshl_b32 {sT1}, {sT1}, 8", sT1, sT1)
    sa(f"s_add_u32 {sT0}, {sT0}, {sT1}", sT0, [sT0, sT1])
    va(f"v_add_u32 {vDW2}, {sT0}, v110", vDW2, [sT0, "v110"])
    sa(f"s_lshl_b32 {sT0}, {sCG}, 6", sT0, sCG)
    sa(f"s_add_u32 {sT1}, {sT1}, {sT0}", sT1, [sT1, sT0])
    sa(f"s_and_b32 {sT0}, {sG}, 1", sT0, sG)
    sa(f"s_lshl_b32 {sT2}, {sT0}, 17", sT2, sT0)
    sa(f"s_add_u32 {sT1}, {sT1}, {sT2}", sT1, [sT1, sT2])
    sa(f"s_lshl_b32 {sT2}, {sMM}, 18", sT2, sMM)
    sa(f"s_add_u32 {sT1}, {sT1}, {sT2}", sT1, [sT1, sT2])
    sa(f"s_lshl_b32 {sT2}, {sP}, 15", sT2, sP)
    sa(f"s_add_u32 {sT1}, {sT1}, {sT2}", sT1, [sT1, sT2])
    va(f"v_and_b32 v106, 31, {vL}", "v106", vL)
    va(f"v_lshl_add_u32 v106, v106, 10, {sT1}", "v106", ["v106", sT1])
    va(f"v_lshl_add_u32 {vOUT}, v108, 5, v106", vOUT, ["v108", "v106"])
    va(f"v_lshlrev_b32 {vSO}, 4, {vL}", vSO, vL)
    sa(f"s_mul_i32 {sT1}, {sP}, 98304", sT1, sP)
    va(f"v_add_u32 {vSA}, {sT1}, {vSO}", vSA, [sT1, vSO])
    sa(f"s_lshl_b32 {sSA2}, 65536, {sP}", sSA2, sP)
    sa(f"s_add_u32 {sT1}, {sC0}, {sW}", sT1, [sC0, sW])
    sa(f"s_and_b32 {sGP}, {sT1}, 7", sGP, sT1)
    sa(f"s_lshl_b32 {sT1}, {sGP}, 7", sT1, sGP)
    va(f"v_lshl_add_u32 v106, {vL}, 3, {sT1}", "v106", [vL, sT1])
    va(f"v_mov_b32 v110, {hex(OOB)}", "v110")
    va(f"v_cmp_gt_u32 vcc, 4, {vL}", "vcc", vL)
    va(f"v_cndmask_b32 {vPF}, v110, v106, vcc", vPF, ["v110", "v106", "vcc"])
def p2_d():
    sa(f"s_and_b32 {sT0}, {sG}, 1", sT0, sG)
    sa(f"s_lshl_b32 {sT1}, {sG}, 2", sT1, sG)
    sa(f"s_add_u32 {sT1}, {sT1}, {sCG}", sT1, [sT1, sCG])
    sa(f"s_lshl_b32 {sT2}, {sM}, 3", sT2, sM)
    sa(f"s_lshl_b32 {sT3}, {sP}, 2", sT3, sP)
    sa(f"s_add_u32 {sT3}, {sT3}, {sT2}", sT3, [sT3, sT2])
    sa(f"s_lshl_b32 {sSB}, {sT3}, 5", sSB, sT3)
    sa(f"s_add_u32 {sSB}, {sSB}, {sT1}", sSB, [sSB, sT1])
    sa(f"s_lshl_b32 {sSB}, {sSB}, 10", sSB, sSB)
    sa(f"s_lshl_b32 {sFB}, {sT3}, 3", sFB, sT3)
    sa(f"s_add_u32 {sFB}, {sFB}, {sG}", sFB, [sFB, sG])
    sa(f"s_lshl_b32 {sFB}, {sFB}, 7", sFB, sFB)
    sa(f"s_lshl_b32 {sT3}, {sCG}, 3", sT3, sCG)
    sa(f"s_add_u32 {sFB}, {sFB}, {sT3}", sFB, [sFB, sT3])
    sa(f"s_add_u32 {sFB}, {sFB}, {WS_SFLAG}", sFB, sFB)
    sa(f"s_lshl_b32 {sT3}, {sM}, 5", sT3, sM)
    sa(f"s_add_u32 {sT3}, {sT3}, {sT1}", sT3, [sT3, sT1])
    sa(f"s_lshl_b32 {sHD}, {sT3}, 9", sHD, sT3)
    sa(f"s_add_u32 {sHD}, {sHD}, {WS_HALO}", sHD, sHD)
    sa(f"s_add_u32 {sND}, {sHD}, {32*512}", sND, sHD)
    sa(f"s_lshl_b32 {sHF}, {sT3}, 7", sHF, sT3)
    sa(f"s_add_u32 {sHF}, {sHF}, {WS_HFLAG}", sHF, sHF)
    sa(f"s_add_u32 {sNF}, {sHF}, {32*128}", sNF, sHF)
    sa(f"s_cmp_lg_u32 {sMM}, 15", "scc", sMM)
    sa(f"s_cselect_b32 {sNEEDH}, 1, 0", sNEEDH, "scc")
    sa(f"s_lshl_b32 {sT3}, {sT0}, 2", sT3, sT0)
    sa(f"s_add_u32 {sT3}, {sT3}, {sT2}", sT3, [sT3, sT2])
    sa(f"s_lshl_b32 {sPB}, {sT3}, 10", sPB, sT3)
    sa(f"s_add_u32 {sPB}, {sPB}, {WS_SFLAG}", sPB, sPB)
    sa(f"s_lshl_b32 {sT3}, {sT3}, 3", sT3, sT3)
    sa(f"s_add_u32 {sLB}, {sT3}, {sGP}", sLB, [sT3, sGP])
    sa(f"s_lshl_b32 {sLB}, {sLB}, 12", sLB, sLB)
    sa(f"s_lshl_b32 {sW4096}, {sW}, 12", sW4096, sW)
    sa(f"s_cmp_eq_u32 {sP}, 1", "scc", sP)
    sa("s_cselect_b64 vcc, -1, 0", "vcc", "scc")

def wait_pages(pages):
    idx = []
    for p in pages:
        v = page_dma[p]
        idx += list(v) if isinstance(v, tuple) else [v]
    for role in ("A", "B"):
        c = [i for i in idx if role in e.vm_ops[i]]
        if c: e.wait_vm(max(c))
def barrier_with(pages, name=None):
    if name: stamp(name + ".pre")
    wait_pages(pages)
    e.barrier()
    if name: stamp(name)
def role_bar(role, pages, name, drain=False):
    stamp(name + ".pre")
    e.begin_role(role)
    wait_pages(pages)
    if drain:
        e.raw("s_waitcnt lgkmcnt(0)", kind="wait")
    e.barrier()
    e.end_role()
    stamp(name)
def x_read(dst, page, s_):
    base = vXA if page < 8 else vXB
    return e.ds_read("ds_read_b128", V(dst, 4), base[s_], (page % 8) * PAGE)
def w_tr(bases, f, page, s_):
    for ee in range(2):
        addr = page * PAGE + 4096 * s_ + 1024 * ee
        e.ds_read("ds_read_b64_tr_b16", A(4 * f + 2 * ee, 2), bases[addr >> 16], addr & 0xffff)
def wl(a, b):
    return [(1, lambda f=f: w_tr(vWU, f, 2 * (f // 4) if f < 24 else 2 * (f // 4) - 8, f % 4)) for f in range(a, b)]

def spin(check, load):
    ok = e.newlabel("L_ok"); lp = e.newlabel("L_poll")
    check(ok)
    sa(f"s_mov_b32 {sCNT}, 0", sCNT)
    e.label(lp)
    e.raw("s_sleep 1")
    e.raw(load)
    e.raw("s_waitcnt vmcnt(0)", kind="wait")
    check(ok)
    sa(f"s_add_u32 {sCNT}, {sCNT}, 1", sCNT, sCNT)
    sa(f"s_cmp_lt_u32 {sCNT}, {SPIN_LIMIT}", "scc", sCNT)
    e.raw(f"s_cbranch_scc1 {lp}", kind="branch")
    e.label(ok)
    e.nop(2)
def poll_check(mask, load):
    def chk(ok):
        va(f"v_cmp_eq_u32 {sCM2}, {EP0}, {POL0}", sCM2, [EP0, POL0])
        va(f"v_cmp_eq_u32 {sCMP}, {EP1}, {POL1}", sCMP, [EP1, POL1])
        e.nop(2)
        sa("s_and_b32 s84, s84, s100", "s84", ["s84", "s100"])
        sa(f"s_and_b32 s84, s84, {mask}", "s84", "s84")
        sa(f"s_cmp_eq_u32 s84, {mask}", "scc", "s84")
        e.raw(f"s_cbranch_scc1 {ok}", kind="branch")
    spin(chk, load)
def poll_issue(voff, soff):
    e.vload("buffer_load_dwordx2", "v[70:71]", voff, sWS, soff, flags=" sc1")
    return f"buffer_load_dwordx2 v[70:71], {voff}, {sWS}, {soff} offen sc1"
def epoch_get():
    def chk(ok):
        va(f"v_cmp_ne_u32 {sCMP}, 0, {EP0}", sCMP, EP0)
        e.nop(2)
        sa("s_and_b32 s84, s84, 1", "s84", "s84")
        e.raw(f"s_cbranch_scc1 {ok}", kind="branch")
    spin(chk, f"buffer_load_dword {EP0}, {vFL}, {sDBG}, 0 offen sc1")
    e.rfl("s70", EP0)
    va(f"v_mov_b32 {EP0}, s70", EP0, "s70")
    va(f"v_not_b32 {EP1}, s70", EP1, "s70")
def flag_store(key, soff_reg, add):
    e.wait_vm(st[key])
    if add:
        sa(f"s_add_u32 {sFT}, {soff_reg}, {add}", sFT, soff_reg)
        soff_reg = sFT
    e.vstore("buffer_store_dwordx2", "v[68:69]", vFL, sWS, soff_reg, flags=" sc1")

def glu_fillers(r, first=None):
    F = []
    slot = r % 2
    for gp in (0, 2):
        a = [E + 4 * gp + j for j in range(4)]
        b = [E + 4 * (gp + 1) + j for j in range(4)]
        for j in range(4):
            F.append((9, lambda a=a[j], b=b[j]: e.perm(V(a), V(b))))
        for j in range(4):
            F.append((4, lambda b=b[j]: va(f"v_mul_f32 {V(b)}, {LOG2E}, {V(b)}", V(b), V(b))))
        for j in range(4):
            F.append((9, lambda b=b[j]: e.trans(f"v_exp_f32 {V(b)}, {V(b)}", V(b), V(b))))
        for j in range(4):
            F.append((4, lambda b=b[j]: va(f"v_add_f32 {V(b)}, 1.0, {V(b)}", V(b), V(b))))
        for j in range(4):
            F.append((9, lambda b=b[j]: e.trans(f"v_rcp_f32 {V(b)}, {V(b)}", V(b), V(b))))
        for j in range(4):
            F.append((4, lambda a=a[j], b=b[j]: va(f"v_mul_f32 {V(a)}, {V(a)}, {V(b)}", V(a), [V(a), V(b)])))
        u = UU + gp
        F.append((4, lambda a=a, u=u: va(f"v_cvt_pk_bf16_f32 {V(u)}, {V(a[0])}, {V(a[1])}", V(u), [V(a[0]), V(a[1])])))
        F.append((4, lambda a=a, u=u: va(f"v_cvt_pk_bf16_f32 {V(u+1)}, {V(a[2])}, {V(a[3])}", V(u + 1), [V(a[2]), V(a[3])])))
        F.append((1, lambda u=u, gp=gp: e.ds_write("ds_write_b64", vHW, V(u, 2), slot * 64 + gp * 16)))
        if first == "B" and gp == 0:
            F.append((1, lambda u=u: e.ds_write("ds_write_b64", vHP1, V(u, 2), 0)))
        if first == "A" and gp == 0:
            def halo_store(u=u):
                va(f"v_lshlrev_b32 v{TT}, 3, {vL}", V(TT), vL)
                st["halo_store"] = e.vstore("buffer_store_dwordx2", V(u, 2), V(TT), sWS, sHD, flags=" sc1")
            F.append((9, halo_store))
    return F

def out_fillers(r, ci=CI, co=CO, tt=TT, uu=UU, sf=SF):
    slot = r % 2
    D = {}
    D["rd"] = [(1, lambda u=u: e.ds_read("ds_read_b128", V(ci + 4 * u, 4), ([vHR, vHR1, vHR2][u] if r == 1 else vHR), slot * 64 + 16 * u)) for u in range(3)]
    D["m4"] = [(9, lambda q=q, o=o: e.m4(V(co + 4 * o, 4), V(CW + 2 * q, 2), V(ci + 2 * (o + q), 2), V(co + 4 * o, 4) if q else "0")) for q in range(5) for o in range(2)]
    F = []
    for j in range(8):
        F.append((4, lambda j=j: va(f"v_mul_f32 {V(tt+j)}, {LOG2E}, {V(co+j)}", V(tt + j), V(co + j))))
    for j in range(8):
        F.append((9, lambda j=j: e.trans(f"v_exp_f32 {V(tt+j)}, {V(tt+j)}", V(tt + j), V(tt + j))))
    for j in range(8):
        F.append((4, lambda j=j: va(f"v_add_f32 {V(tt+j)}, 1.0, {V(tt+j)}", V(tt + j), V(tt + j))))
    for j in range(8):
        F.append((9, lambda j=j: e.trans(f"v_rcp_f32 {V(tt+j)}, {V(tt+j)}", V(tt + j), V(tt + j))))
    for j in range(8):
        F.append((4, lambda j=j: va(f"v_mul_f32 {V(tt+j)}, {V(co+j)}, {V(tt+j)}", V(tt + j), [V(co + j), V(tt + j)])))
    for j in range(4):
        F.append((4, lambda j=j: va(f"v_cvt_pk_bf16_f32 {V(uu+j)}, {V(tt+2*j)}, {V(tt+2*j+1)}", V(uu + j), [V(tt + 2 * j), V(tt + 2 * j + 1)])))
    D["silu"] = F
    D["tr"] = [(1, lambda: e.ds_write("ds_write_b128", vHR, V(uu, 4), slot * 64))] + \
              [(1, lambda ee=ee: e.ds_read("ds_read_b64_tr_b16", V(sf + 2 * ee, 2), vSR, ee * 4 * HS + slot * 64)) for ee in range(2)]
    def store():
        sa(f"s_add_u32 {sFT}, {sSB}, {r*32768}", sFT, sSB)
        st[("S", r)] = e.vstore("buffer_store_dwordx4", V(sf, 4), vSO, sWS, sFT, flags=" sc1")
    D["st"] = [(9, store)]
    return D

class Ring:
    def __init__(self):
        self.reads = []; self.avail = 0; self.issued = 0; self.used = 0; self.tok = {}
    def fill(self):
        while self.issued < min(self.avail, self.used + len(AF)):
            self.tok[self.issued] = self.reads[self.issued](AF[self.issued % len(AF)])
            self.issued += 1
    def take(self, pairwait=False):
        assert self.used < self.issued
        if pairwait and self.used + 1 < self.issued:
            e.wait_ds(self.tok[self.used + 1])
        r = AF[self.used % len(AF)]
        self.used += 1
        return r
ring = Ring()

def run_segment(mf, F, lead=0, pair=True):
    n = len(mf)
    ngap = sum(-c for c, _ in F if c < 0)
    tot = sum(c for c, _ in F if c > 0)
    per = tot / max(1, n - ngap - 1)
    fi = 0; hold = 0; credit = lead * per
    for i in range(n):
        ring.fill()
        fr = ring.take(pairwait=(pair and i % 2 == 0 and i + 1 < n))
        mf[i](fr)
        ring.fill()
        if hold > 0:
            hold -= 1
            if hold > 0:
                continue
        credit += per
        while fi < len(F) and credit > 0:
            c, f = F[fi]; fi += 1
            if c < 0:
                hold = -c; credit = min(credit, 0); break
            f(); credit -= c
    while fi < len(F):
        if F[fi][0] >= 0: F[fi][1]()
        fi += 1
def run(F):
    for c, f in F:
        if c >= 0: f()
def merge(F1, F2):
    if not F1: return list(F2)
    out = []; n1 = len(F1); n2 = len(F2); k = 0
    for i, f in enumerate(F1):
        while k < n2 and k * n1 <= i * n2:
            out.append(F2[k]); k += 1
        out.append(f)
    return out + list(F2[k:])
def g1_mfma(f):
    return lambda fr: e.m32(V(E if f == 31 else ACC, 16), V(fr, 4), A(4 * f, 4), V(ACC, 16) if f else "0")
def g2_mfma(f):
    return lambda fr: e.m32(V(E if f == 31 else ACC, 16), A(4 * f, 4), V(fr, 4), V(ACC, 16) if f else "0")

after = {
    0: lambda: dma_chunk(3),
    1: lambda: dma_chunk(4),
    2: lambda: dma_chunk(5),
    3: lambda: dma_chunk(6),
    4: lambda: dma_chunk(7),
    5: lambda: (dma_x(8, 0, vDX), dma_x(9, 1, vDX), dma_x(10, 2, vDX), dma_x(11, 3, vDX)),
    6: lambda: (dma_x(12, 4, vDX), dma_x(13, 5, vDX), dma_x(14, 6, vDX), dma_x(15, 7, vDX),
                va(f"v_add_u32 {vDX}, 0x8000, {vDX}", vDX, vDX)),
    7: lambda: (dma_x(0, 0, vDX), dma_x(1, 1, vDX), dma_x(2, 2, vDX), dma_x(3, 3, vDX)),
}
REC = Rec()
p2_a(); p2_b(); p2_c(); p2_d()
P2 = REC.ops; REC = None
CWT = [E + n for n in range(16)] + [CO + n for n in range(4)]
for f in P2: f()
for j in range(8):
    wp, xp = ST0[j]
    barrier_with([wp, wp + 1, xp], f"c{j}" if j in (0, 4) else None)
    for s_ in range(4):
        ring.reads.append(lambda dst, xp=xp, s_=s_: x_read(dst, xp, s_))
    ring.avail = len(ring.reads)
    for s_ in range(4):
        w_tr(vWT, 4 * j + s_, wp, s_)
        ring.fill()
    if "asym0" not in XP:
        after[j]()
        run_segment([g1_mfma(4 * j + s_) for s_ in range(4)], [], pair=False)
    else:
        pd = dict(page_dma)
        e.begin_role("A"); after[j](); e.end_role()
        pa = dict(page_dma)
        run_segment([g1_mfma(4 * j + s_) for s_ in range(4)], [], pair=False)
        e.begin_role("B"); after[j](); e.end_role()
        for pg in page_dma:
            if page_dma[pg] != pd.get(pg):
                page_dma[pg] = (pa[pg], page_dma[pg])
    if j == 2:
        e.wait_vm(st["dw"])
        for n in range(20):
            e.ds_read("ds_read_u16", V(CWT[n]), vDR, n * 32)
        for n in range(10):
            va(f"v_lshl_or_b32 {V(CW+n)}, {V(CWT[2*n+1])}, 16, {V(CWT[2*n])}", V(CW + n), [V(CWT[2 * n + 1]), V(CWT[2 * n])])
    if j == 4:
        e.vload("buffer_load_dword", EP0, vFL, sDBG, "0", flags=" sc1")
    if j == 7:
        epoch_get()

XQ = {1: Q[2] + Q[3], 2: Q[0] + Q[1], 3: Q[2] + Q[3]}
base_idx = len(ring.reads)
for s in (1, 2, 3):
    for j in range(8):
        for s_ in range(4):
            ring.reads.append(lambda dst, p=XQ[s][j], s_=s_: x_read(dst, p, s_))

def dma_group(k):
    F = []
    if k == 0:
        for j in range(4, 8):
            F.append((9, lambda j=j: dma_x(j, j, vDX)))
        F.append((4, lambda: va(f"v_add_u32 {vDX}, 0x8000, {vDX}", vDX, vDX)))
    elif k == 1:
        for j in range(4):
            F.append((9, lambda j=j: dma_x(8 + j, j, vDX)))
    elif k == 2:
        for j in range(4, 8):
            F.append((9, lambda j=j: dma_x(8 + j, j, vDX)))
    else:
        for j in (2 * (k - 3), 2 * (k - 3) + 1):
            pg = 2 * j if k < 6 else 2 * j - 8
            F.append((9, lambda j=j, pg=pg: dma_w(pg, j, 2, 0)))
            F.append((9, lambda j=j, pg=pg: dma_w(pg, j, 2, 1)))
    return F
def Mblock(k, F=(), late=()):
    e.comment(f"---- M{k}")
    e.raw("s_setprio 0")
    ring.avail = base_idx + 16 * (k + 1)
    run_segment([g1_mfma(16 * (k % 2) + i) for i in range(12)], list(F))
    run(list(late))
    run_segment([g1_mfma(16 * (k % 2) + i) for i in range(12, 16)], [])
    e.raw("s_setprio 1")
def prefetch(k):
    ring.avail = base_idx + 16 * (k + 1)
    ring.fill()
def conv_run(D):
    run(D["m4"])

def touch(rs):
    for r in rs:
        sa(f"s_add_u32 {sFT}, {sSB}, {r*32768}", sFT, sSB)
        e.vload("buffer_load_dword", "v116", vSO, sWS, sFT, keep=True)
        sa(f"s_add_u32 {sFT}, {sFB}, {r*1024}", sFT, sFB)
        e.vload("buffer_load_dword", "v116", vFL, sWS, sFT, keep=True)
def touch_out():
    e.vload("buffer_load_dword", "v116", vOUT, sOUT, "0", keep=True)
    sa(f"s_mov_b32 {sFT}, 0x10000", sFT)
    e.vload("buffer_load_dword", "v116", vOUT, sOUT, sFT, keep=True)
barrier_with(Q[2], "k0")
e.raw("s_setprio 1")
e.begin_role("B"); run(glu_fillers(0, first="B")); e.end_role()
Mblock(0, ([(9, lambda: touch((0, 1)))] if "ts" in XP else []) + dma_group(0) + ([(9, lambda: touch((2, 3)))] if "ts" in XP else []))
role_bar("B", Q[3], "b1")
e.begin_role("A"); run(glu_fillers(0, first="A")); e.end_role()
sa(f"s_lshl_b32 {sD}, {sKC[0]}, 9", sD, sKC[0])
e.vload("buffer_load_dword", "v116", vDW2, sW2, sD, keep=True)
sa(f"s_add_u32 {sD}, {sD}, 4096", sD, sD)
e.vload("buffer_load_dword", "v116", vDW2, sW2, sD, keep=True)
role_bar("A", Q[3] + Q[0], "a1")
Mblock(1, dma_group(1) + ([(9, touch_out)] if "to" in XP else []))
role_bar("B", Q[0], "b2")
def odict(r):
    return out_fillers(r, sf=CI)

def halo_flag():
    e.begin_role("A"); flag_store("halo_store", sHF, 0); e.end_role()
def halo_poll():
    e.begin_role("B"); st["hp"] = poll_issue(vFL, sNF); e.end_role()
def halo_get():
    e.begin_role("B")
    poll_check(sNEEDH, st["hp"])
    va(f"v_lshlrev_b32 v{POL0[1:]}, 3, {vL}", POL0, vL)
    e.vload("buffer_load_dwordx2", "v[70:71]", POL0, sWS, sND, flags=" sc1")
    e.end_role()
def halo_put():
    e.begin_role("B"); e.ds_write("ds_write_b64", vHP2, "v[70:71]", 0); e.end_role()

for s in (1, 2):
    k = 2 * s - 1
    G = glu_fillers(s)
    run(G[:GSPLIT])
    prefetch(k + 1)
    role_bar("A", Q[[0, 1, 2, 3, 3][k]], f"a{k+1}")
    D = odict(s - 1)
    misc = [(9, halo_flag)] if s == 1 else [(9, halo_get), (9, lambda: flag_store(("S", 0), sFB, 0))]
    Mblock(k + 1, merge(G[GSPLIT:], misc + dma_group(k + 1)), D["rd"])
    role_bar("B", Q[1] if s == 1 else Q[3] + Q[0], f"b{k+2}")
    if s == 2:
        halo_put()
        va(f"v_add_u32 {vWU[1]}, 0x10000, {vWU[0]}", vWU[1], vWU[0])
    run(D["m4"])
    run(D["silu"] + D["tr"])
    prefetch(k + 2)
    role_bar("A", Q[2] if s == 1 else Q[0], f"a{k+2}")
    rest = D["st"]
    if s == 1:
        Mblock(k + 2, rest + dma_group(k + 2) + [(9, halo_poll)])
        role_bar("B", Q[2], f"b{k+3}")
    else:
        Mblock(k + 2, rest + merge(dma_group(k + 2), wl(0, 8)), [(9, lambda: flag_store(("S", 1), sFB, 1024))])
        role_bar("B", Q[1], f"b{k+3}", drain=True)

TQ = [0, 3, 2, 4]
def dma_T(i):
    sa(f"s_add_u32 m0, {sW4096}, {TQ[i]*4*PAGE}", "m0", sW4096)
    sa(f"s_add_u32 {sD}, {sLB}, {i*32768}", sD, sLB)
    for q in range(4):
        idx = e.dma(vSO, sWS, sD, off=q * 1024, flags=" sc1")
    for p in Q[TQ[i]]:
        page_dma[p] = idx
def poll_tile(i):
    sa(f"s_add_u32 {sPT}, {sPB}, {i*1024}", sPT, sPB)
    return poll_issue(vPF, sPT)

e.begin_role("B"); e.raw("s_setprio 2"); e.end_role()
tp = poll_tile(0)
G3 = glu_fillers(3)
run(G3)
role_bar("A", Q[1], "a6", drain=True)
D2 = out_fillers(2, sf=CI)
D3 = out_fillers(3, ci=ACC, co=48, tt=56, uu=64, sf=28)
run(D2["rd"]); run(D3["rd"])
stamp("t0a")
poll_check(0xF, tp)
stamp("t0b")
dma_T(0)
tp = poll_tile(1)
m4 = [x for p in zip(D2["m4"], D3["m4"]) for x in p]
run(m4)
S23 = merge(D2["silu"][:24], wl(8, 16))
run(S23)
stamp("t1a")
poll_check(0xF, tp)
stamp("t1b")
dma_T(1)
run(D2["silu"][24:] + D2["tr"] + D3["silu"][:20] + D2["st"] + D3["silu"][20:] + D3["tr"])
flag_store(("S", 2), sFB, 2048)
run(D3["st"])
e.wait_all(vm=False, ds=True)
barrier_with(Q[0] + Q[3] + Q[2], "B2")
e.raw("s_setprio 0")
for f in range(32):
    ring.reads.append(lambda dst, f=f: e.ds_read("ds_read_b128", V(dst, 4), vSA, f * 1024))
ring.avail = len(ring.reads)
run_segment([g2_mfma(f) for f in range(2)], wl(16, 24), lead=1)
stamp("f3a")
flag_store(("S", 3), sFB, 3072)
stamp("f3b")
run_segment([g2_mfma(f) for f in range(2, 6)], dma_group(6), lead=1)
tp = poll_tile(2)
e.wait_ds(max(e.pend_ds.get(f"a{i}", -1) for i in range(64, 96)))
barrier_with([], "B3a")
run_segment([g2_mfma(f) for f in range(6, 10)], [])
stamp("t2a")
poll_check(0xF, tp)
stamp("t2b")
dma_T(2)
tp = poll_tile(3)
run_segment([g2_mfma(f) for f in range(10, 14)], [])
stamp("t3a")
poll_check(0xF, tp)
stamp("t3b")
dma_T(3)
run_segment([g2_mfma(f) for f in range(14, 18)], [])
barrier_with(Q[1], "B3b")
run_segment([g2_mfma(f) for f in range(18, 24)], wl(24, 32), lead=3)
run_segment([g2_mfma(f) for f in range(24, 32)], [])

def out_epilogue():
    for j in range(8):
        va(f"v_cvt_pk_bf16_f32 {V(TT+j)}, {V(E+2*j)}, {V(E+2*j+1)}", V(TT + j), [V(E + 2 * j), V(E + 2 * j + 1)])
    e.vstore("buffer_store_dwordx4", V(TT, 4), vOUT, sOUT, "0")
    e.vstore("buffer_store_dwordx4", V(TT + 4, 4), vOUT, sOUT, "0", off=16)

va(f"v_add_u32 {vSA}, {sSA2}, {vSO}", vSA, [sSA2, vSO])
out_epilogue()
va(f"v_add_u32 {vOUT}, 0x10000, {vOUT}", vOUT, vOUT)
barrier_with(Q[4] + Q[2], "B4")
for f in range(32):
    ring.reads.append(lambda dst, f=f: e.ds_read("ds_read_b128", V(dst, 4), vSA, f * 1024))
ring.avail = len(ring.reads)
run_segment([g2_mfma(f) for f in range(32)], [])
stamp('g2end')
out_epilogue()
if DIAG:
    e.wait_all()
    stamp('end')
    e.raw("s_memrealtime s[96:97]", kind="smem")
    e.raw("s_waitcnt lgkmcnt(0)", kind="wait")
    stamp('x')
    e.raw("v_writelane_b32 v119, s96, 2", kind="valu")
    va(f"v_lshlrev_b32 v0, 2, {vL}", "v0", vL)
    e.nop(4)
    e.vstore("buffer_store_dword", "v119", "v0", sWS, sDG)
    STAMPS.pop()
e.label("L_end")

header = open(os.path.join(os.path.dirname(__file__), "header.txt")).read()
src = header + f"""; @launch grid=(256,1,1) block=(512,1,1) lds={LDS_BYTES}
.amdgcn_target "amdgcn-amd-amdhsa--gfx950"
.text
.globl {NAME}_kernel
.p2align 8
.type {NAME}_kernel,@function
{NAME}_kernel:
{e.text()}    s_endpgm
.section .rodata,"a"
.p2align 6
.amdhsa_kernel {NAME}_kernel
  .amdhsa_next_free_vgpr 256
  .amdhsa_next_free_sgpr 102
  .amdhsa_accum_offset 128
  .amdhsa_group_segment_fixed_size 0
  .amdhsa_kernarg_size 56
  .amdhsa_user_sgpr_count 2
  .amdhsa_user_sgpr_kernarg_segment_ptr 1
  .amdhsa_system_sgpr_workgroup_id_x 1
.end_amdhsa_kernel
"""
if DIAG:
    src += "; STAMPS " + " ".join(STAMPS) + "\n"
out = OUTP[0] if OUTP else f"cdna_kernels/{NAME}.s"
open(out, "w").write(src)
print("wrote", out, e.count, file=sys.stderr)
```

```python
import sys, os
sys.path.insert(0, os.path.dirname(__file__))
from em import Em, R

NAME = "standalone__conformer_conv_module__speech"
DIAG = "--diag" in sys.argv
XP = dict((a[4:].split("=") + ["1"])[:2] for a in sys.argv if a.startswith("--x-"))
OUTP = [a for a in sys.argv[1:] if not a.startswith("--")]
GSPLIT = int(XP.get("gs", 99))
OSPLIT = int(XP.get("os", 99))

PAGE = 8192
HBASE = 17 * PAGE
HS = 160
HW = 16 * HS
DUMMY = HBASE + 8 * HW
LDS_BYTES = 163840
ST0 = [(4, 6), (8, 7), (10, 12), (14, 13), (0, 2), (16, 3), (18, 6), (4, 7)]
Q = [[0, 1, 2, 3], [4, 5, 6, 7], [8, 9, 10, 11], [12, 13, 14, 15], [16, 17, 18, 19]]
WS_HALO = 8 << 20
WS_SFLAG = 9 << 20
WS_HFLAG = 10 << 20
WS_DIAG = 11 << 20
WS_BYTES = 16 << 20
OOB = 0x80000000
SPIN_LIMIT = 1 << 18

sX, sW1, sW2, sWS, sOUT, sDW, sDBG = "s[20:23]", "s[24:27]", "s[28:31]", "s[32:35]", "s[36:39]", "s[40:43]", "s[44:47]"
sW, sCG, sP, sM, sG, sMM, sB, sC0 = "s48", "s49", "s50", "s51", "s52", "s53", "s54", "s55"
sKC = [f"s{56+j}" for j in range(8)]
sW1024, sW2048, sT0, sT1, sT2, sT3 = "s64", "s65", "s66", "s67", "s68", "s69"
sD = "s18"
sXW = "s19"
sSB, sFB, sHD, sHF, sND, sNF, sLB, sPB, sNEEDH, sCNT, sW4096 = [f"s{72+i}" for i in range(11)]
LOG2E = "s83"
sCMP, sCM2 = "s[84:85]", "s[100:101]"
sDG, sGP, sPT, sFT = "s86", "s87", "s88", "s89"
sBO = "s3"
vL = "v1"
vXA = [f"v{2+i}" for i in range(4)]
vDX, vDX0, vDW1, vDW2 = "v6", "v7", "v8", "v9"
vHW, vHP1, vHP2 = "v10", "v11", "v12"
vHR, vHR1, vHR2, vSR, vSO, vSA, vOUT = "v13", "v14", "v15", "v16", "v17", "v18", "v19"
vFL, vPF = "v20", "v21"
vWT, vWU0, vWU1, vDD = "v22", "v23", "v24", "v25"
EP0, EP1, POL0, POL1 = "v26", "v27", "v28", "v29"
vDR, vST = "v30", "v31"
ACCS = [32, 48, 64, 80]
CW = 96
UU = 106
T0_ = 110

e = Em()
def V(i, n=1): return R("v", i, n)
def A(i, n=1): return R("a", i, n)
def va(t, w, r=()): e.valu(t, w, r)
def sa(t, w=(), r=()): e.salu(t, w, r)

STAMPS = []
def stamp(name):
    if not DIAG:
        return
    i = len(STAMPS)
    assert i < 60
    if i >= 1:
        r = 92 + 2 * ((i - 1) % 2)
        e.raw(f"v_writelane_b32 v31, s{r}, {i - 1 + 3}", kind="valu")
    r = 92 + 2 * (i % 2)
    e.raw(f"s_memtime s[{r}:{r+1}]", kind="smem")
    STAMPS.append(str(name))

sa("s_cmp_ge_u32 s2, 256")
e.raw("s_cbranch_scc1 L_end", kind="branch")
e.raw("s_load_dwordx8 s[4:11], s[0:1], 0", kind="smem")
e.raw("s_load_dwordx4 s[12:15], s[0:1], 32", kind="smem")
e.raw("s_load_dwordx2 s[16:17], s[0:1], 48", kind="smem")
e.raw("s_memrealtime s[70:71]", kind="smem")
if DIAG:
    e.raw("s_memtime s[90:91]", kind="smem")
va("v_lshrrev_b32 v112, 6, v0", "v112", "v0")
va(f"v_and_b32 {vL}, 63, v0", vL, "v0")
e.rfl(sW, "v112")
sa(f"s_and_b32 {sT0}, s2, 7", sT0)
sa(f"s_lshr_b32 {sT1}, s2, 3", sT1)
sa(f"s_and_b32 {sG}, {sT1}, 7", sG, sT1)
sa(f"s_lshr_b32 {sT1}, {sT1}, 3", sT1, sT1)
sa(f"s_lshl_b32 {sM}, {sT0}, 2", sM, sT0)
sa(f"s_add_u32 {sM}, {sM}, {sT1}", sM, [sM, sT1])
sa(f"s_and_b32 {sMM}, {sM}, 15", sMM, sM)
sa(f"s_lshr_b32 {sB}, {sM}, 4", sB, sM)
sa(f"s_lshl_b32 {sT1}, {sT1}, 1", sT1, sT1)
sa(f"s_add_u32 {sC0}, {sG}, {sT1}", sC0, [sG, sT1])
sa(f"s_and_b32 {sCG}, {sW}, 3", sCG, sW)
sa(f"s_lshr_b32 {sP}, {sW}, 2", sP, sW)
sa(f"s_lshl_b32 {sW1024}, {sW}, 10", sW1024, sW)
sa(f"s_lshl_b32 {sW2048}, {sW}, 11", sW2048, sW)
sa(f"s_mul_i32 {sBO}, {sB}, 4096000", sBO, sB)
sa(f"s_lshl_b32 {sXW}, {sP}, 14", sXW, sP)
sa(f"s_lshl_b32 {sT0}, {sCG}, 10", sT0, sCG)
sa(f"s_add_u32 {sXW}, {sXW}, {sT0}", sXW, [sXW, sT0])
def kc(j):
    sa(f"s_add_u32 {sKC[j]}, {sC0}, {j}", sKC[j], sC0)
    sa(f"s_and_b32 {sKC[j]}, {sKC[j]}, 7", sKC[j], sKC[j])
    sa(f"s_lshl_b32 {sKC[j]}, {sKC[j]}, 7", sKC[j], sKC[j])
kc(0)
va(f"v_lshrrev_b32 v112, 4, {vL}", "v112", vL)
va(f"v_and_b32 v113, 7, {vL}", "v113", vL)
va("v_lshlrev_b32 v114, 1, v112", "v114", "v112")
va("v_xor_b32 v114, v114, v113", "v114", ["v114", "v113"])
va("v_lshlrev_b32 v114, 4, v114", "v114", "v114")
va(f"v_bfe_u32 v115, {vL}, 3, 1", "v115", vL)
va("v_lshl_add_u32 v114, v115, 10, v114", "v114", ["v115", "v114"])
va("v_lshl_add_u32 v114, v112, 11, v114", "v114", ["v112", "v114"])
sa(f"s_lshl_b32 {sT0}, {sW}, 14", sT0, sW)
sa(f"s_lshl_b32 {sT1}, {sG}, 7", sT1, sG)
sa(f"s_add_u32 {sT0}, {sT0}, {sT1}", sT0, [sT0, sT1])
va(f"v_add_u32 {vDW1}, {sT0}, v114", vDW1, [sT0, "v114"])
va(f"v_lshrrev_b32 v112, 3, {vL}", "v112", vL)
sa(f"s_lshl_b32 {sT0}, {sCG}, 3", sT0, sCG)
va(f"v_add_u32 v112, {sT0}, v112", "v112", [sT0, "v112"])
va("v_bfe_u32 v114, v112, 1, 3", "v114", "v112")
va("v_xor_b32 v114, v114, v113", "v114", ["v114", "v113"])
sa(f"s_lshl_b32 {sT0}, {sMM}, 8", sT0, sMM)
sa(f"s_lshl_b32 {sT1}, {sP}, 7", sT1, sP)
sa(f"s_add_u32 {sT0}, {sT0}, {sT1}", sT0, [sT0, sT1])
sa(f"s_sub_u32 {sT0}, {sT0}, 7", sT0, sT0)
va(f"v_add_u32 v112, {sT0}, v112", "v112", [sT0, "v112"])
va("v_lshlrev_b32 v115, 10, v112", "v115", "v112")
va("v_lshl_add_u32 v115, v114, 4, v115", "v115", ["v114", "v115"])
va("v_cmp_gt_i32 vcc, 0, v112", "vcc", "v112")
va(f"v_mov_b32 v114, {hex(OOB)}", "v114")
va(f"v_cndmask_b32 {vDX0}, v115, v114, vcc", vDX0, ["v115", "v114", "vcc"])
va(f"v_add_u32 {vDX}, 0x8000, v115", vDX, "v115")
sa("s_mov_b32 s26, 1048576", "s26"); sa("s_mov_b32 s27, 0x00020000", "s27")
sa("s_mov_b32 s22, 4096000", "s22"); sa("s_mov_b32 s23, 0x00020000", "s23")
e.raw("s_waitcnt lgkmcnt(0)", kind="wait")
sa("s_mov_b32 s24, s6", "s24"); sa("s_mov_b32 s25, s7", "s25")
sa(f"s_add_u32 s20, s4, {sBO}", "s20", sBO); sa("s_addc_u32 s21, s5, 0", "s21")

st = {}
chunk_dma = {}
SLOT = 49152
def dma_w1(j, part):
    sb = (j % 3) * SLOT
    sa(f"s_add_u32 m0, {sW2048}, {sb}", "m0", sW2048)
    sa(f"s_lshl_b32 {sD}, {sKC[j]}, 10", sD, sKC[j])
    if part == 0:
        chunk_dma[j] = e.dma(vDW1, sW1, sD)
    else:
        sa(f"s_add_u32 {sD}, {sD}, {8192-1024}", sD, sD)
        chunk_dma[j] = e.dma(vDW1, sW1, sD, off=1024)
def dma_x(j, i):
    sb = (j % 3) * SLOT
    sa(f"s_add_u32 m0, {sXW}, {sb + 16384 + i*4096}", "m0", sXW)
    if i == 0:
        chunk_dma[j] = e.dma(vDX0, sX, sKC[j])
    elif i == 1:
        chunk_dma[j] = e.dma(vDX, sX, sKC[j])
    else:
        sa(f"s_add_u32 {sD}, {sKC[j]}, {(i-1)*32768}", sD, sKC[j])
        chunk_dma[j] = e.dma(vDX, sX, sD)
def chunk_list(j):
    return [(9, lambda: dma_w1(j, 0)), (9, lambda: dma_w1(j, 1))] + [(9, lambda i=i: dma_x(j, i)) for i in range(4)]
WPG = [12, 14, 0, 2, 4, 6, 8, 10]
def dma_w2(j, part):
    sa(f"s_add_u32 m0, {sW2048}, {WPG[j]*PAGE}", "m0", sW2048)
    sa(f"s_lshl_b32 {sD}, {sKC[j]}, 9", sD, sKC[j])
    if part == 0:
        st["w2"] = e.dma(vDW2, sW2, sD)
    else:
        sa(f"s_add_u32 {sD}, {sD}, {4096-1024}", sD, sD)
        st["w2"] = e.dma(vDW2, sW2, sD, off=1024)
def w2_list(js):
    return [(9, lambda j=j, p=p: dma_w2(j, p)) for j in js for p in range(2)]

for c, f in chunk_list(0): f()
kc(1); kc(2); kc(3)
va(f"v_and_b32 v113, 3, {vL}", "v113", vL)
va(f"v_bfe_u32 v115, {vL}, 4, 1", "v115", vL)
va(f"v_lshrrev_b32 v116, 5, {vL}", "v116", vL)
va(f"v_bfe_u32 v117, {vL}, 2, 2", "v117", vL)
va("v_lshl_add_u32 v114, v116, 3, v117", "v114", ["v116", "v117"])
va("v_lshlrev_b32 v114, 8, v114", "v114", "v114")
va("v_lshrrev_b32 v118, 1, v113", "v118", "v113")
sa(f"s_lshl_b32 {sT1}, {sCG}, 1", sT1, sCG)
va(f"v_add_u32 v118, {sT1}, v118", "v118", [sT1, "v118"])
va("v_lshlrev_b32 v119, 1, v117", "v119", "v117")
va("v_xor_b32 v118, v118, v119", "v118", ["v118", "v119"])
va("v_lshl_add_u32 v118, v118, 4, v114", "v118", ["v118", "v114"])
va("v_lshl_add_u32 v118, v115, 7, v118", "v118", ["v115", "v118"])
va("v_and_b32 v119, 1, v113", "v119", "v113")
va(f"v_lshl_add_u32 {vWT}, v119, 3, v118", vWT, ["v119", "v118"])
va(f"v_xor_b32 v118, {sCG}, v117", "v118", [sCG, "v117"])
va("v_lshl_add_u32 v118, v118, 6, v114", "v118", ["v118", "v114"])
va("v_lshl_add_u32 v118, v119, 5, v118", "v118", ["v119", "v118"])
va("v_lshl_add_u32 v118, v115, 4, v118", "v118", ["v115", "v118"])
va("v_lshrrev_b32 v119, 1, v113", "v119", "v113")
va(f"v_lshl_add_u32 {vWU0}, v119, 3, v118", vWU0, ["v119", "v118"])
va(f"v_add_u32 {vWU1}, 0x10000, {vWU0}", vWU1, vWU0)
va(f"v_and_b32 v114, 31, {vL}", "v114", vL)
va("v_bfe_u32 v118, v114, 1, 3", "v118", "v114")
va("v_xor_b32 v118, v118, v116", "v118", ["v118", "v116"])
sa(f"s_lshl_b32 {sT1}, {sP}, 14", sT1, sP)
sa(f"s_add_u32 {sT1}, {sT1}, 16384", sT1, sT1)
va(f"v_lshl_add_u32 v114, v114, 7, {sT1}", "v114", ["v114", sT1])
for s_ in range(4):
    va(f"v_xor_b32 v119, {2*s_}, v118", "v119", "v118")
    va(f"v_lshl_add_u32 {vXA[s_]}, v119, 4, v114", vXA[s_], ["v119", "v114"])
e.barrier()
for c, f in chunk_list(1)[:int(XP.get("pre1", 0))]: f()
kc(4); kc(5); kc(6); kc(7)
va(f"v_lshrrev_b32 v112, 2, {vL}", "v112", vL)
sa(f"s_lshl_b32 {sT0}, {sG}, 7", sT0, sG)
sa(f"s_lshl_b32 {sT1}, {sCG}, 5", sT1, sCG)
sa(f"s_add_u32 {sT0}, {sT0}, {sT1}", sT0, [sT0, sT1])
sa(f"s_sub_u32 {sT0}, {sT0}, 3072", sT0, sT0)
va(f"v_lshrrev_b32 v114, 1, {vL}", "v114", vL)
va(f"v_lshl_add_u32 v114, v114, 10, {sT0}", "v114", ["v114", sT0])
va(f"v_and_b32 v118, 1, {vL}", "v118", vL)
va(f"v_lshl_add_u32 {vDD}, v118, 4, v114", vDD, ["v118", "v114"])
sa(f"s_add_u32 {sT1}, {sW1024}, {18*PAGE + 96}", sT1, sW1024)
va(f"v_lshl_add_u32 v114, v112, 1, {sT1}", "v114", ["v112", sT1])
va("v_lshlrev_b32 v118, 5, v113", "v118", "v113")
va(f"v_sub_u32 {vDR}, v114, v118", vDR, ["v114", "v118"])
sa("s_mov_b32 s40, s8", "s40"); sa("s_mov_b32 s41, s9", "s41")
sa("s_mov_b32 s42, 15360", "s42"); sa("s_mov_b32 s43, 0x00020000", "s43")
def dma_dw():
    sa(f"s_add_u32 m0, {sW1024}, {18*PAGE}", "m0", sW1024)
    st["dw"] = e.dma(vDD, sDW, "0")

class Rec:
    def __init__(self): self.ops = []
REC = None
_va, _sa = va, sa
def va(t, w, r=()):
    if REC is not None: REC.ops.append(lambda: _va(t, w, r))
    else: _va(t, w, r)
def sa(t, w=(), r=()):
    if REC is not None: REC.ops.append(lambda: _sa(t, w, r))
    else: _sa(t, w, r)
def later(f):
    if REC is not None: REC.ops.append(f)
    else: f()
def p2_a():
    sa("s_mov_b32 s28, s10", "s28"); sa("s_mov_b32 s29, s11", "s29")
    sa("s_mov_b32 s30, 524288", "s30"); sa("s_mov_b32 s31, 0x00020000", "s31")
    sa("s_mov_b32 s32, s16", "s32"); sa("s_mov_b32 s33, s17", "s33")
    sa(f"s_mov_b32 s34, {WS_BYTES}", "s34"); sa("s_mov_b32 s35, 0x00020000", "s35")
    sa(f"s_add_u32 s36, s12, {sBO}", "s36", sBO); sa("s_addc_u32 s37, s13, 0", "s37")
    sa("s_mov_b32 s38, 4096000", "s38"); sa("s_mov_b32 s39, 0x00020000", "s39")
    sa("s_mov_b32 s44, s14", "s44"); sa("s_mov_b32 s45, s15", "s45")
    sa("s_mov_b32 s46, 256", "s46"); sa("s_mov_b32 s47, 0x00020000", "s47")
    va(f"v_mov_b32 v114, {hex(OOB)}", "v114")
    va(f"v_cmp_eq_u32 vcc, 0, {vL}", "vcc", vL)
    va(f"v_cndmask_b32 {vFL}, v114, {vL}, vcc", vFL, ["v114", vL, "vcc"])
    sa("s_mov_b32 s96, s70", "s96", "s70")
    sa("s_or_b32 s70, s70, 1", "s70", "s70")
    sa("s_lshl_b32 s71, s2, 10", "s71")
    va("v_add_u32 v112, s71, v0", "v112", ["s71", "v0"])
    va("v_cmp_eq_u32 vcc, 0, v112", "vcc", "v112")
    va("v_cndmask_b32 v112, v114, v112, vcc", "v112", ["v114", "v112", "vcc"])
    va("v_mov_b32 v118, s70", "v118", "s70")
    later(lambda: e.vstore("buffer_store_dword", "v118", "v112", sDBG, "0", flags=" sc1"))
    sa(f"s_mov_b32 {LOG2E}, 0xbfb8aa3b", LOG2E)
    if DIAG:
        sa(f"s_lshl_b32 {sDG}, s2, 3", sDG)
        sa(f"s_add_u32 {sDG}, {sDG}, {sW}", sDG, [sDG, sW])
        sa(f"s_lshl_b32 {sDG}, {sDG}, 8", sDG, sDG)
        sa(f"s_add_u32 {sDG}, {sDG}, {WS_DIAG}", sDG, sDG)
        later(lambda: e.raw("v_writelane_b32 v31, s90, 0", kind="valu"))
        later(lambda: e.raw("v_writelane_b32 v31, s96, 1", kind="valu"))
def p2_b():
    va(f"v_lshrrev_b32 v112, 2, {vL}", "v112", vL)
    sa(f"s_mul_i32 {sT0}, {sW}, {HW}", sT0, sW)
    sa(f"s_add_u32 {sT0}, {sT0}, {HBASE}", sT0, sT0)
    va(f"v_mul_u32_u24 v114, {HS}, v112", "v114", "v112")
    va("v_lshl_add_u32 v114, v113, 4, v114", "v114", ["v113", "v114"])
    va(f"v_add_u32 {vHR}, {sT0}, v114", vHR, [sT0, "v114"])
    va(f"v_subrev_u32 v118, 128, {vHR}", "v118", vHR)
    va("v_cmp_eq_u32 vcc, 3, v113", "vcc", "v113")
    va(f"v_cndmask_b32 {vHR1}, {vHR}, v118, vcc", vHR1, [vHR, "v118", "vcc"])
    va("v_cmp_lt_u32 vcc, 1, v113", "vcc", "v113")
    va(f"v_cndmask_b32 {vHR2}, {vHR}, v118, vcc", vHR2, [vHR, "v118", "vcc"])
    va(f"v_and_b32 v114, 15, {vL}", "v114", vL)
    va(f"v_mul_u32_u24 v114, {HS}, v114", "v114", "v114")
    va("v_lshl_add_u32 v114, v115, 4, v114", "v114", ["v115", "v114"])
    va("v_lshl_add_u32 v114, v116, 3, v114", "v114", ["v116", "v114"])
    va(f"v_add_u32 {vHW}, {sT0}, v114", vHW, [sT0, "v114"])
    sa(f"s_sub_u32 {sT1}, {sT0}, {4*HW - 128}", sT1, sT0)
    sa(f"s_add_u32 {sT2}, {sT0}, 128", sT2, sT0)
    sa(f"s_cmp_eq_u32 {sP}, 0", "scc", sP)
    sa(f"s_cselect_b32 {sT1}, {DUMMY}, {sT1}", sT1, [sT1, "scc"])
    sa(f"s_cselect_b32 {sT2}, {DUMMY}, {sT2}", sT2, [sT2, "scc"])
    va(f"v_add_u32 {vHP1}, {sT1}, v114", vHP1, [sT1, "v114"])
    va(f"v_add_u32 {vHP2}, {sT2}, v114", vHP2, [sT2, "v114"])
    va("v_lshl_add_u32 v114, v116, 3, v117", "v114", ["v116", "v117"])
    va(f"v_mul_u32_u24 v114, {HS}, v114", "v114", "v114")
    va("v_lshl_add_u32 v114, v115, 5, v114", "v114", ["v115", "v114"])
    va("v_lshl_add_u32 v114, v113, 3, v114", "v114", ["v113", "v114"])
    va(f"v_add_u32 {vSR}, {sT0}, v114", vSR, [sT0, "v114"])
def p2_c():
    va(f"v_lshrrev_b32 v114, 4, {vL}", "v114", vL)
    va("v_xor_b32 v118, v117, v114", "v118", ["v117", "v114"])
    va("v_lshl_add_u32 v118, v118, 2, v113", "v118", ["v118", "v113"])
    va("v_lshlrev_b32 v118, 4, v118", "v118", "v118")
    va("v_lshl_add_u32 v118, v114, 10, v118", "v118", ["v114", "v118"])
    sa(f"s_lshl_b32 {sT0}, {sW}, 13", sT0, sW)
    sa(f"s_lshr_b32 {sT1}, {sG}, 1", sT1, sG)
    sa(f"s_lshl_b32 {sT1}, {sT1}, 8", sT1, sT1)
    sa(f"s_add_u32 {sT0}, {sT0}, {sT1}", sT0, [sT0, sT1])
    va(f"v_add_u32 {vDW2}, {sT0}, v118", vDW2, [sT0, "v118"])
    sa(f"s_lshl_b32 {sT0}, {sCG}, 6", sT0, sCG)
    sa(f"s_add_u32 {sT1}, {sT1}, {sT0}", sT1, [sT1, sT0])
    sa(f"s_and_b32 {sT0}, {sG}, 1", sT0, sG)
    sa(f"s_lshl_b32 {sT2}, {sT0}, 17", sT2, sT0)
    sa(f"s_add_u32 {sT1}, {sT1}, {sT2}", sT1, [sT1, sT2])
    sa(f"s_lshl_b32 {sT2}, {sMM}, 18", sT2, sMM)
    sa(f"s_add_u32 {sT1}, {sT1}, {sT2}", sT1, [sT1, sT2])
    sa(f"s_lshl_b32 {sT2}, {sP}, 15", sT2, sP)
    sa(f"s_add_u32 {sT1}, {sT1}, {sT2}", sT1, [sT1, sT2])
    va(f"v_and_b32 v114, 31, {vL}", "v114", vL)
    va(f"v_lshl_add_u32 v114, v114, 10, {sT1}", "v114", ["v114", sT1])
    va(f"v_lshl_add_u32 {vOUT}, v116, 5, v114", vOUT, ["v116", "v114"])
    va(f"v_lshlrev_b32 {vSO}, 4, {vL}", vSO, vL)
    sa(f"s_lshl_b32 {sT1}, {sP}, 15", sT1, sP)
    va(f"v_add_u32 {vSA}, {sT1}, {vSO}", vSA, [sT1, vSO])
    sa(f"s_add_u32 {sT1}, {sC0}, {sW}", sT1, [sC0, sW])
    sa(f"s_and_b32 {sGP}, {sT1}, 7", sGP, sT1)
    sa(f"s_lshl_b32 {sT1}, {sGP}, 7", sT1, sGP)
    va(f"v_and_b32 v114, 4, {vL}", "v114", vL)
    va(f"v_lshl_add_u32 v114, v114, 8, {sT1}", "v114", ["v114", sT1])
    va("v_lshl_add_u32 v114, v113, 3, v114", "v114", ["v113", "v114"])
    va(f"v_mov_b32 v118, {hex(OOB)}", "v118")
    va(f"v_cmp_gt_u32 vcc, 8, {vL}", "vcc", vL)
    va(f"v_cndmask_b32 {vPF}, v118, v114, vcc", vPF, ["v118", "v114", "vcc"])
def p2_d():
    sa(f"s_and_b32 {sT0}, {sG}, 1", sT0, sG)
    sa(f"s_lshl_b32 {sT1}, {sG}, 2", sT1, sG)
    sa(f"s_add_u32 {sT1}, {sT1}, {sCG}", sT1, [sT1, sCG])
    sa(f"s_lshl_b32 {sT2}, {sM}, 3", sT2, sM)
    sa(f"s_lshl_b32 {sT3}, {sP}, 2", sT3, sP)
    sa(f"s_add_u32 {sT3}, {sT3}, {sT2}", sT3, [sT3, sT2])
    sa(f"s_lshl_b32 {sSB}, {sT3}, 5", sSB, sT3)
    sa(f"s_add_u32 {sSB}, {sSB}, {sT1}", sSB, [sSB, sT1])
    sa(f"s_lshl_b32 {sSB}, {sSB}, 10", sSB, sSB)
    sa(f"s_lshl_b32 {sFB}, {sT3}, 3", sFB, sT3)
    sa(f"s_add_u32 {sFB}, {sFB}, {sG}", sFB, [sFB, sG])
    sa(f"s_lshl_b32 {sFB}, {sFB}, 7", sFB, sFB)
    sa(f"s_lshl_b32 {sT3}, {sCG}, 3", sT3, sCG)
    sa(f"s_add_u32 {sFB}, {sFB}, {sT3}", sFB, [sFB, sT3])
    sa(f"s_add_u32 {sFB}, {sFB}, {WS_SFLAG}", sFB, sFB)
    sa(f"s_lshl_b32 {sT3}, {sM}, 5", sT3, sM)
    sa(f"s_add_u32 {sT3}, {sT3}, {sT1}", sT3, [sT3, sT1])
    sa(f"s_lshl_b32 {sHD}, {sT3}, 9", sHD, sT3)
    sa(f"s_add_u32 {sHD}, {sHD}, {WS_HALO}", sHD, sHD)
    sa(f"s_add_u32 {sND}, {sHD}, {32*512}", sND, sHD)
    sa(f"s_lshl_b32 {sHF}, {sT3}, 7", sHF, sT3)
    sa(f"s_add_u32 {sHF}, {sHF}, {WS_HFLAG}", sHF, sHF)
    sa(f"s_add_u32 {sNF}, {sHF}, {32*128}", sNF, sHF)
    sa(f"s_cmp_lg_u32 {sMM}, 15", "scc", sMM)
    sa(f"s_cselect_b32 {sNEEDH}, 1, 0", sNEEDH, "scc")
    sa(f"s_lshl_b32 {sT3}, {sT0}, 2", sT3, sT0)
    sa(f"s_add_u32 {sT3}, {sT3}, {sT2}", sT3, [sT3, sT2])
    sa(f"s_lshl_b32 {sPB}, {sT3}, 10", sPB, sT3)
    sa(f"s_add_u32 {sPB}, {sPB}, {WS_SFLAG}", sPB, sPB)
    sa(f"s_lshl_b32 {sT3}, {sT3}, 3", sT3, sT3)
    sa(f"s_add_u32 {sLB}, {sT3}, {sGP}", sLB, [sT3, sGP])
    sa(f"s_lshl_b32 {sLB}, {sLB}, 12", sLB, sLB)
    sa(f"s_lshl_b32 {sW4096}, {sW}, 12", sW4096, sW)
    sa(f"s_cmp_eq_u32 {sP}, 1", "scc", sP)
    sa("s_cselect_b64 vcc, -1, 0", "vcc", "scc")

def spin(check, load):
    ok = e.newlabel("L_ok"); lp = e.newlabel("L_poll")
    check(ok)
    sa(f"s_mov_b32 {sCNT}, 0", sCNT)
    e.label(lp)
    e.raw("s_sleep 1")
    e.raw(load)
    e.raw("s_waitcnt vmcnt(0)", kind="wait")
    check(ok)
    sa(f"s_add_u32 {sCNT}, {sCNT}, 1", sCNT, sCNT)
    sa(f"s_cmp_lt_u32 {sCNT}, {SPIN_LIMIT}", "scc", sCNT)
    e.raw(f"s_cbranch_scc1 {lp}", kind="branch")
    e.label(ok)
    e.nop(2)
def poll_check(mask, load):
    def chk(ok):
        va(f"v_cmp_eq_u32 {sCM2}, {EP0}, {POL0}", sCM2, [EP0, POL0])
        va(f"v_cmp_eq_u32 {sCMP}, {EP1}, {POL1}", sCMP, [EP1, POL1])
        e.nop(2)
        sa("s_and_b32 s84, s84, s100", "s84", ["s84", "s100"])
        sa(f"s_and_b32 s84, s84, {mask}", "s84", "s84")
        sa(f"s_cmp_eq_u32 s84, {mask}", "scc", "s84")
        e.raw(f"s_cbranch_scc1 {ok}", kind="branch")
    spin(chk, load)
def poll_issue(voff, soff):
    e.vload("buffer_load_dwordx2", "v[28:29]", voff, sWS, soff, flags=" sc1")
    return f"buffer_load_dwordx2 v[28:29], {voff}, {sWS}, {soff} offen sc1"
def epoch_get():
    def chk(ok):
        va(f"v_cmp_ne_u32 {sCMP}, 0, {EP0}", sCMP, EP0)
        e.nop(2)
        sa("s_and_b32 s84, s84, 1", "s84", "s84")
        e.raw(f"s_cbranch_scc1 {ok}", kind="branch")
    spin(chk, f"buffer_load_dword {EP0}, {vFL}, {sDBG}, 0 offen sc1")
    e.rfl("s70", EP0)
    va(f"v_mov_b32 {EP0}, s70", EP0, "s70")
    va(f"v_not_b32 {EP1}, s70", EP1, "s70")
def flag_store(key, soff_reg, add):
    e.wait_vm(st[key])
    if add:
        sa(f"s_add_u32 {sFT}, {soff_reg}, {add}", sFT, soff_reg)
        soff_reg = sFT
    e.vstore("buffer_store_dwordx2", "v[26:27]", vFL, sWS, soff_reg, flags=" sc1")

def glu_fillers(r):
    F = []
    slot = r % 2
    Eb = ACCS[r]
    for gp in (0, 2):
        a = [Eb + 4 * gp + j for j in range(4)]
        b = [Eb + 4 * (gp + 1) + j for j in range(4)]
        for j in range(4):
            F.append((9, lambda a=a[j], b=b[j]: e.perm(V(a), V(b))))
        for j in range(4):
            F.append((4, lambda b=b[j]: va(f"v_mul_f32 {V(b)}, {LOG2E}, {V(b)}", V(b), V(b))))
        for j in range(4):
            F.append((9, lambda b=b[j]: e.trans(f"v_exp_f32 {V(b)}, {V(b)}", V(b), V(b))))
        for j in range(4):
            F.append((4, lambda b=b[j]: va(f"v_add_f32 {V(b)}, 1.0, {V(b)}", V(b), V(b))))
        for j in range(4):
            F.append((9, lambda b=b[j]: e.trans(f"v_rcp_f32 {V(b)}, {V(b)}", V(b), V(b))))
        for j in range(4):
            F.append((4, lambda a=a[j], b=b[j]: va(f"v_mul_f32 {V(a)}, {V(a)}, {V(b)}", V(a), [V(a), V(b)])))
        u = UU + gp
        F.append((4, lambda a=a, u=u: va(f"v_cvt_pk_bf16_f32 {V(u)}, {V(a[0])}, {V(a[1])}", V(u), [V(a[0]), V(a[1])])))
        F.append((4, lambda a=a, u=u: va(f"v_cvt_pk_bf16_f32 {V(u+1)}, {V(a[2])}, {V(a[3])}", V(u + 1), [V(a[2]), V(a[3])])))
        F.append((1, lambda u=u, gp=gp: e.ds_write("ds_write_b64", vHW, V(u, 2), slot * 64 + gp * 16)))
        if r == 0 and gp == 0:
            F.append((1, lambda u=u: e.ds_write("ds_write_b64", vHP1, V(u, 2), 0)))
            def halo_store(u=u):
                e.begin_role("A")
                va(f"v_lshlrev_b32 v{T0_}, 3, {vL}", V(T0_), vL)
                st["halo_store"] = e.vstore("buffer_store_dwordx2", V(u, 2), V(T0_), sWS, sHD, flags=" sc1")
                e.end_role()
            F.append((9, halo_store))
    return F

def out_fillers(r, ci, co, tt, uu, sf):
    slot = r % 2
    D = {}
    D["rd"] = [(1, lambda u=u: e.ds_read("ds_read_b128", V(ci + 4 * u, 4), ([vHR, vHR1, vHR2][u] if r == 1 else vHR), slot * 64 + 16 * u)) for u in range(3)]
    D["m4"] = [(9, lambda q=q, o=o: e.m4(V(co + 4 * o, 4), V(CW + 2 * q, 2), V(ci + 2 * (o + q), 2), V(co + 4 * o, 4) if q else "0")) for q in range(5) for o in range(2)]
    F = []
    for j in range(8):
        F.append((4, lambda j=j: va(f"v_mul_f32 {V(tt+j)}, {LOG2E}, {V(co+j)}", V(tt + j), V(co + j))))
    for j in range(8):
        F.append((9, lambda j=j: e.trans(f"v_exp_f32 {V(tt+j)}, {V(tt+j)}", V(tt + j), V(tt + j))))
    for j in range(8):
        F.append((4, lambda j=j: va(f"v_add_f32 {V(tt+j)}, 1.0, {V(tt+j)}", V(tt + j), V(tt + j))))
    for j in range(8):
        F.append((9, lambda j=j: e.trans(f"v_rcp_f32 {V(tt+j)}, {V(tt+j)}", V(tt + j), V(tt + j))))
    for j in range(8):
        F.append((4, lambda j=j: va(f"v_mul_f32 {V(tt+j)}, {V(co+j)}, {V(tt+j)}", V(tt + j), [V(co + j), V(tt + j)])))
    for j in range(4):
        F.append((4, lambda j=j: va(f"v_cvt_pk_bf16_f32 {V(uu+j)}, {V(tt+2*j)}, {V(tt+2*j+1)}", V(uu + j), [V(tt + 2 * j), V(tt + 2 * j + 1)])))
    D["silu"] = F
    D["tr"] = [(1, lambda: e.ds_write("ds_write_b128", vHR, V(uu, 4), slot * 64))] + \
              [(1, lambda ee=ee: e.ds_read("ds_read_b64_tr_b16", V(sf + 2 * ee, 2), vSR, ee * 4 * HS + slot * 64)) for ee in range(2)]
    def store():
        sa(f"s_add_u32 {sFT}, {sSB}, {r*32768}", sFT, sSB)
        st[("S", r)] = e.vstore("buffer_store_dwordx4", V(sf, 4), vSO, sWS, sFT, flags=" sc1")
    D["st"] = [(9, store)]
    return D

class Ring:
    def __init__(self, regs):
        self.regs = regs; self.reads = []; self.avail = 0; self.issued = 0; self.used = 0; self.tok = {}
    def fill(self, maxn=99):
        n = 0
        while self.issued < min(self.avail, self.used + len(self.regs)) and n < maxn:
            self.tok[self.issued] = self.reads[self.issued](self.regs[self.issued % len(self.regs)])
            self.issued += 1; n += 1
    def peek(self, k=0):
        assert self.used + k < self.issued
        return self.regs[(self.used + k) % len(self.regs)]
    def pop(self):
        self.used += 1
def run(F):
    for c, f in F:
        if c >= 0: f()
def merge(F1, F2):
    if not F1: return list(F2)
    out = []; n1 = len(F1); n2 = len(F2); k = 0
    for i, f in enumerate(F1):
        while k < n2 and k * n1 <= i * n2:
            out.append(F2[k]); k += 1
        out.append(f)
    return out + list(F2[k:])

p2_a(); p2_b(); p2_c(); p2_d()

ra = Ring([96 + 4 * i for i in range(8)])
rb = Ring([84 + 4 * i for i in range(3)])
cur_slot = [0]
def a_rd(j, s_, i):
    return lambda dst: e.ds_read("ds_read_b128", A(dst, 4), vXA[s_], i * 4096)
def b_rd(j, s_):
    def f(dst):
        e.ds_read("ds_read_b64_tr_b16", A(dst, 2), vWT, 4096 * s_)
        return e.ds_read("ds_read_b64_tr_b16", A(dst + 2, 2), vWT, 4096 * s_ + 1024)
    return f
for j in range(8):
    for s_ in range(4):
        rb.reads.append(b_rd(j, s_))
        for i in range(4):
            ra.reads.append(a_rd(j, s_, i))
def open_chunk(j):
    stamp(f"c{j}.pre")
    if j > 0:
        assert ra.issued == 16 * j and rb.issued == 4 * j
        e.wait_all(vm=False, ds=True)
    if j < 8:
        e.wait_vm(chunk_dma[j])
    e.barrier()
    stamp(f"c{j}")
    if j < 8:
        if j > 0:
            d = SLOT if j % 3 else -2 * SLOT
            for r_ in vXA + [vWT]:
                va(f"v_add_u32 {r_}, {hex(d & 0xffffffff)}, {r_}", r_, r_)
        ra.avail = 16 * (j + 1); rb.avail = 4 * (j + 1)
        rb.fill(1); ra.fill(2); rb.fill(); ra.fill()
CWT = [110 + n for n in range(18)] + [106, 107]
open_chunk(0)
for j in range(8):
    e.comment(f"---- chunk {j}")
    F = []
    if 1 <= j <= 5: F = chunk_list(j + 2)
    if j == 6: F = w2_list([0, 1])
    if j == 7: F = w2_list([2, 3, 4])
    if j == 0:
        F = chunk_list(1)[int(XP.get("pre1", 0)):] + [(9, dma_dw)] + chunk_list(2)
    if j == 2:
        F = merge(F, [(1, lambda: e.wait_vm(st["dw"]))] + [(1, lambda n=n: e.ds_read("ds_read_u16", V(CWT[n]), vDR, n * 32)) for n in range(20)])
    if j == 3:
        F = merge(F, [(4, lambda n=n: va(f"v_lshl_or_b32 {V(CW+n)}, {V(CWT[2*n+1])}, 16, {V(CWT[2*n])}", V(CW + n), [V(CWT[2 * n + 1]), V(CWT[2 * n])])) for n in range(10)])
    if j == 3: F = F + [(9, lambda: e.vload("buffer_load_dword", EP0, vFL, sDBG, "0", flags=" sc1"))]
    if j == 4:
        def w2_warm():
            sa(f"s_lshl_b32 {sD}, {sKC[0]}, 9", sD, sKC[0])
            e.vload("buffer_load_dword", vDD, vDW2, sW2, sD, keep=True)
            sa(f"s_add_u32 {sD}, {sD}, 4096", sD, sD)
            e.vload("buffer_load_dword", vDD, vDW2, sW2, sD, keep=True)
        F = F + [(9, w2_warm)]
    if j == 6: F = F + [(9, epoch_get)]
    tot = sum(c for c, _ in F); per = tot / 11.0; credit = 0.0; fi = 0
    for n in range(16):
        s_, i = divmod(n, 4)
        if n == 12:
            while fi < len(F): F[fi][1](); fi += 1
            open_chunk(j + 1)
        if "prio" in XP and n in (12, 4):
            hi = "B" if n == 12 else "A"
            lo = "A" if n == 12 else "B"
            e.begin_role(hi); e.raw("s_setprio 1"); e.end_role()
            e.begin_role(lo); e.raw("s_setprio 0"); e.end_role()
        first = (j == 0 and s_ == 0)
        if n % 2 == 0 and ra.used + 1 < ra.issued:
            e.wait_ds(ra.tok[ra.used + 1])
        e.m32(V(ACCS[i], 16), A(ra.peek(), 4), A(rb.peek(), 4), "0" if first else V(ACCS[i], 16))
        ra.pop()
        if i == 3: rb.pop()
        rb.fill(); ra.fill()
        credit += per
        while fi < len(F) and credit > 0 and n < 12:
            F[fi][1](); credit -= F[fi][0]; fi += 1

def w_tr(f):
    j, s_ = divmod(f, 4)
    for ee in range(2):
        addr = WPG[j] * PAGE + 4096 * s_ + 1024 * ee
        e.ds_read("ds_read_b64_tr_b16", A(4 * f + 2 * ee, 2), [vWU0, vWU1][addr >> 16], addr & 0xffff)
def wl(a, b):
    return [(1, lambda f=f: w_tr(f)) for f in range(a, b)]
def dma_T(i):
    sa(f"s_add_u32 m0, {sW4096}, {i*4*PAGE}", "m0", sW4096)
    sa(f"s_add_u32 {sD}, {sLB}, {i*32768}", sD, sLB)
    for q in range(4):
        st[("T", i)] = e.dma(vSO, sWS, sD, off=q * 1024, flags=" sc1")
def poll_tile(i):
    sa(f"s_add_u32 {sPT}, {sPB}, {i*1024}", sPT, sPB)
    return poll_issue(vPF, sPT)

if "prio" in XP: e.raw("s_setprio 0")
if "prioB" in XP:
    e.begin_role("B"); e.raw("s_setprio 1"); e.end_role()
run(merge(glu_fillers(0), w2_list([5, 6, 7])))
run(glu_fillers(1))
e.begin_role("A"); flag_store("halo_store", sHF, 0); e.end_role()
D0 = out_fillers(0, 32, 48, 56, UU, 32)
run(D0["rd"])
stamp("Bw.pre")
e.wait_vm(st["w2"])
e.barrier()
stamp("Bw")
run(D0["m4"])
run(merge(D0["silu"], wl(0, 16)) + D0["tr"])
G2 = glu_fillers(2)
run(G2[:8]); run(D0["st"])
e.begin_role("B"); st["hp"] = poll_issue(vFL, sNF); e.end_role()
run(merge(G2[8:], wl(16, 32)))
D1 = out_fillers(1, 32, 48, 56, UU, 32)
run(D1["rd"])
flag_store(("S", 0), sFB, 0)
stamp("Bf.pre")
e.wait_ds(max(e.pend_ds.get(f"a{i}", -1) for i in range(128)))
e.barrier()
stamp("Bf")
run(D1["m4"])
run(D1["silu"] + D1["tr"])
e.begin_role("B")
poll_check(sNEEDH, st["hp"])
va(f"v_lshlrev_b32 {POL0}, 3, {vL}", POL0, vL)
e.vload("buffer_load_dwordx2", "v[28:29]", POL0, sWS, sND, flags=" sc1")
e.end_role()
G3 = glu_fillers(3)
run(G3[:8]); run(D1["st"])
run(G3[8:])
e.ds_write("ds_write_b64", vHP2, "v[28:29]", 0)
D2 = out_fillers(2, 32, 48, 56, UU, 32)
D3 = out_fillers(3, 64, 80, 88, 110, 64)
run(D2["rd"]); run(D3["rd"])
run([x for p in zip(D2["m4"], D3["m4"]) for x in p])
run(D2["silu"][:24])
flag_store(("S", 1), sFB, 1024)
run(D2["silu"][24:] + D2["tr"] + D3["silu"][:16])
tp = poll_tile(0)
run(D2["st"])
run(D3["silu"][16:] + D3["tr"])
run(D3["st"])
stamp("t01a")
poll_check(0xFF, tp)
stamp("t01b")
dma_T(0); dma_T(1)
flag_store(("S", 2), sFB, 2048)
flag_store(("S", 3), sFB, 3072)
stamp("B2.pre")
e.wait_vm(st[("T", 1)])
e.barrier()
stamp("B2")
ACC, E = 32, 48
rs = Ring([64 + 4 * i for i in range(8)])
for t in range(2):
    for f in range(32):
        rs.reads.append(lambda dst, f=f: e.ds_read("ds_read_b128", V(dst, 4), vSA, f * 1024))
def g2(f0, f1):
    for f in range(f0, f1):
        rs.fill()
        if f % 2 == 0 and rs.used + 1 < rs.issued:
            e.wait_ds(rs.tok[rs.used + 1])
        e.m32(V(E if f == 31 else ACC, 16), A(4 * f, 4), V(rs.peek(), 4), V(ACC, 16) if f else "0")
        rs.pop()
        rs.fill()
def out_epilogue():
    for j in range(8):
        va(f"v_cvt_pk_bf16_f32 {V(110+j)}, {V(E+2*j)}, {V(E+2*j+1)}", V(110 + j), [V(E + 2 * j), V(E + 2 * j + 1)])
    e.vstore("buffer_store_dwordx4", V(110, 4), vOUT, sOUT, "0")
    e.vstore("buffer_store_dwordx4", V(114, 4), vOUT, sOUT, "0", off=16)
rs.avail = 32
P2A = int(XP.get("p2", 10))
g2(0, P2A - 4)
tp = poll_tile(2)
g2(P2A - 4, P2A)
stamp("t23a")
poll_check(0xFF, tp)
stamp("t23b")
dma_T(2); dma_T(3)
g2(P2A, 32)
va(f"v_add_u32 {vSA}, 0x10000, {vSA}", vSA, vSA)
out_epilogue()
va(f"v_add_u32 {vOUT}, 0x10000, {vOUT}", vOUT, vOUT)
stamp("B4.pre")
e.wait_vm(st[("T", 3)])
e.barrier()
stamp("B4")
rs.avail = 64
g2(0, 32)
stamp('g2end')
out_epilogue()
if DIAG:
    e.wait_all()
    stamp('end')
    e.raw("s_memrealtime s[96:97]", kind="smem")
    e.raw("s_waitcnt lgkmcnt(0)", kind="wait")
    stamp('x')
    e.raw("v_writelane_b32 v31, s96, 2", kind="valu")
    va(f"v_lshlrev_b32 v0, 2, {vL}", "v0", vL)
    e.nop(4)
    e.vstore("buffer_store_dword", "v31", "v0", sWS, sDG)
    STAMPS.pop()
e.label("L_end")

header = open(os.path.join(os.path.dirname(__file__), "header.txt")).read()
src = header + f"""; @launch grid=(256,1,1) block=(512,1,1) lds={LDS_BYTES}
.amdgcn_target "amdgcn-amd-amdhsa--gfx950"
.text
.globl {NAME}_kernel
.p2align 8
.type {NAME}_kernel,@function
{NAME}_kernel:
{e.text()}    s_endpgm
.section .rodata,"a"
.p2align 6
.amdhsa_kernel {NAME}_kernel
  .amdhsa_next_free_vgpr 256
  .amdhsa_next_free_sgpr 102
  .amdhsa_accum_offset 128
  .amdhsa_group_segment_fixed_size 0
  .amdhsa_kernarg_size 56
  .amdhsa_user_sgpr_count 2
  .amdhsa_user_sgpr_kernarg_segment_ptr 1
  .amdhsa_system_sgpr_workgroup_id_x 1
.end_amdhsa_kernel
"""
if DIAG:
    src += "; STAMPS " + " ".join(STAMPS) + "\n"
out = OUTP[0] if OUTP else f"cdna_kernels/{NAME}.s"
open(out, "w").write(src)
print("wrote", out, e.count, file=sys.stderr)
```
